```python
import torch

def _softmax(x, axis=-1):
    return torch.softmax(x, dim=axis)

def _gelu(x):
    return torch.nn.functional.gelu(x, approximate='tanh')

def _silu(x):
    return torch.nn.functional.silu(x)

def _sigmoid(x):
    return torch.sigmoid(x)

def _layernorm(x, axis=-1, eps=1e-05):
    m = x.mean(dim=axis, keepdim=True)
    v = x.var(dim=axis, keepdim=True, unbiased=False)
    return (x - m) / torch.sqrt(v + eps)

def _scatter_add(tgt, idx, src, axis=0):
    return tgt.clone().index_add_(axis, idx, src)

def _segment_sum(src, seg, n):
    out = torch.zeros((n,) + src.shape[1:], dtype=src.dtype)
    return out.index_add_(0, seg, src)

def _pad(x, pw):
    flat = tuple((v for pair in reversed(pw) for v in pair))
    return torch.nn.functional.pad(x, flat)
kernel_name = 'adaLN_cond__gqa_block_cached__dense_activation_relu__decode'

def setup_inputs():

    _w = lambda a: (lambda t: t.to(torch.bfloat16) if t.is_floating_point() else t)(torch.as_tensor(a))

    def _A_setup():
        B, Sq, D = (8, 1, 576)
        Hq, Hkv, Sk, Dh = (32, 16, 4096, 128)
        assert Hq % Hkv == 0, (Hq, Hkv)
        return {'x': _w((lambda *s: torch.randn(*s, dtype=torch.bfloat16) * 0.05)(B, Sq, D)), 'k_cache': _w((lambda *s: torch.randn(*s, dtype=torch.bfloat16) * 3.2)(B, Hkv, Sk, Dh)), 'v_cache': _w((lambda *s: torch.randn(*s, dtype=torch.bfloat16) * 0.4)(B, Hkv, Sk, Dh)), 'wq': _w((lambda *s: torch.randn(*s, dtype=torch.bfloat16) * 3.2)(D, Hq * Dh) * D ** (-0.5)), 'wo': _w((lambda *s: torch.randn(*s, dtype=torch.bfloat16) * 0.4)(Hq * Dh, D) * (Hq * Dh) ** (-0.5))}
    _A_in = _A_setup()

    def _B_setup():
        B, S, D, Dff = (8, 1, 576, 4608)
        return {'x': _w((lambda *s: torch.randn(*s, dtype=torch.bfloat16) * 0.05)(B, S, D)), 'w1': _w((lambda *s: torch.randn(*s, dtype=torch.bfloat16) * 0.05)(D, Dff)), 'w2': _w((lambda *s: torch.randn(*s, dtype=torch.bfloat16) * 0.05)(Dff, D))}
    _B_in = _B_setup()
    return {'A_x': _A_in['x'], 'A_k_cache': _A_in['k_cache'], 'A_v_cache': _A_in['v_cache'], 'A_wq': _A_in['wq'], 'A_wo': _A_in['wo'], 'B_x': _B_in['x'], 'B_w1': _B_in['w1'], 'B_w2': _B_in['w2'], 'c': _w((lambda *s: torch.randn(*s, dtype=torch.bfloat16) * 0.2)(8, 576) * 8.0), 'w_mod': _w((lambda *s: torch.randn(*s, dtype=torch.bfloat16) * 0.2)(576, 6 * 576) * 576 ** (-0.5) * 8.0)}

def reference(A_x, A_k_cache, A_v_cache, A_wq, A_wo, B_x, B_w1, B_w2, c, w_mod):

    def _A_ref(x, k_cache, v_cache, wq, wo):
        B, Sq, D = x.shape
        Hq, Dh = (32, 128)
        Hkv = k_cache.shape[1]
        rep = Hq // Hkv
        q = (lambda x, *d: x.permute(*d))((x @ wq).reshape(B, Sq, Hq, Dh), 0, 2, 1, 3)
        k = (lambda x, n, axis: torch.repeat_interleave(x, n, dim=axis))(k_cache, rep, axis=1)
        v = (lambda x, n, axis: torch.repeat_interleave(x, n, dim=axis))(v_cache, rep, axis=1)
        scores = torch.einsum('bhqd,bhkd->bhqk', q, k) * Dh ** (-0.5)
        p = _softmax(scores, axis=-1)
        o = torch.einsum('bhqk,bhkd->bhqd', p, v)
        return (lambda x, *d: x.permute(*d))(o, 0, 2, 1, 3).reshape(B, Sq, Hq * Dh) @ wo

    def _B_ref(x, w1, w2):
        h = torch.einsum('bsd,df->bsf', x, w1)
        zero = torch.zeros_like(h)
        h = torch.maximum(h, zero)
        return torch.einsum('bsf,fd->bsd', h, w2)
    x = A_x
    mod = (_silu(c) @ w_mod).reshape(c.shape[0], 6, 1, -1)
    sa, ca, ga, sb, cb, gb = (mod[:, 0].clone(), mod[:, 1].clone(), mod[:, 2].clone(), mod[:, 3].clone(), mod[:, 4].clone(), mod[:, 5].clone())
    h = _layernorm(x, axis=-1) * (1 + ca) + sa
    x = x + ga * _A_ref(h, A_k_cache, A_v_cache, A_wq, A_wo)
    h = _layernorm(x, axis=-1) * (1 + cb) + sb
    x = x + gb * _B_ref(h, B_w1, B_w2)
    return x
```

```python
import re

REG_RE = re.compile(r'\b([vsa])(\d+)\b|\b([vsa])\[(\d+):(\d+)\]|\b(vcc|exec|m0|scc)(?:_lo|_hi)?\b')

def regs_of(tok):
    out = set()
    for m in REG_RE.finditer(tok):
        if m.group(1): out.add((m.group(1), int(m.group(2))))
        elif m.group(3):
            for i in range(int(m.group(4)), int(m.group(5)) + 1): out.add((m.group(3), i))
        else: out.add((m.group(6), 0))
    return out

TRANS = ('v_exp_f32', 'v_log_f32', 'v_rcp_f32', 'v_rsq_f32', 'v_sqrt_f32', 'v_sin_f32', 'v_cos_f32')

class Ins:
    __slots__ = ('text', 'op', 'kind', 'dst', 'src', 'dpp', 'states', 'srcC', 'srcAB', 'store_data', 'wide')
    def __init__(s, text):
        s.text = text
        t = text.split(';')[0].strip()
        parts = t.split(None, 1)
        s.op = parts[0]
        rest = parts[1] if len(parts) > 1 else ''
        ops = [o.strip() for o in rest.split(',')] if rest else []
        s.dst = set(); s.src = set(); s.dpp = False; s.states = 1; s.srcC = set(); s.srcAB = set(); s.store_data = set(); s.wide = False
        op = s.op
        if op == 's_nop':
            s.kind = 'nop'; s.states = int(ops[0], 0) + 1; return
        if op.startswith('v_mfma'):
            s.kind = 'mfma'; s.dst = regs_of(ops[0]); s.srcAB = regs_of(ops[1]) | regs_of(ops[2]); s.srcC = regs_of(ops[3].split()[0])
            s.src = s.srcAB | s.srcC; return
        if op.startswith('v_'):
            s.kind = 'valu'
            s.dpp = ('quad_perm' in t or 'row_' in t or 'wave_' in t or op.endswith('_dpp'))
            if op.startswith('v_cmp'):
                s.dst = regs_of(ops[0]); s.src = set().union(*[regs_of(o) for o in ops[1:]])
                if op.startswith('v_cmpx'): s.dst |= {('exec', 0)}
            elif op.startswith('v_permlane') and 'swap' in op:
                s.dst = regs_of(ops[0]) | regs_of(ops[1]); s.src = set(s.dst)
            elif op.startswith(('v_add_co', 'v_addc_co', 'v_sub_co', 'v_subb_co', 'v_div_scale')):
                s.dst = regs_of(ops[0]) | regs_of(ops[1]); s.src = set().union(*[regs_of(o) for o in ops[2:]])
            else:
                s.dst = regs_of(ops[0]); s.src = set().union(*[regs_of(o.split()[0]) for o in ops[1:]]) if len(ops) > 1 else set()
                if op.startswith(('v_fmac', 'v_dot2c', 'v_writelane')) or s.dpp: s.src |= s.dst
                if op.startswith('v_cndmask') and len(ops) == 3: s.src |= {('vcc', 0)}
            return
        if op.startswith(('buffer_', 'global_')):
            s.kind = 'vmem'
            if 'lds' in t.split() and 'load' in op:
                s.src = set().union(*[regs_of(o.split()[0]) for o in ops]) | {('m0', 0)}
            elif 'load' in op:
                s.dst = regs_of(ops[0]); s.src = set().union(*[regs_of(o.split()[0]) for o in ops[1:]])
            elif 'store' in op or 'atomic' in op:
                s.src = set().union(*[regs_of(o.split()[0]) for o in ops])
                s.store_data = regs_of(ops[0]) if op.startswith('buffer_') else regs_of(ops[1])
                s.wide = op.endswith(('x3', 'x4'))
                if 'atomic' in op and 'sc0' in t.split(): s.dst = regs_of(ops[0])
            return
        if op.startswith('ds_'):
            s.kind = 'ds'
            if op.startswith(('ds_read', 'ds_bpermute', 'ds_permute', 'ds_swizzle')) or '_rtn' in op:
                s.dst = regs_of(ops[0]); s.src = set().union(*[regs_of(o.split()[0]) for o in ops[1:]])
            else:
                s.src = set().union(*[regs_of(o.split()[0]) for o in ops])
            return
        if op.startswith('s_'):
            s.kind = 'salu'
            if op.startswith(('s_cmp', 's_cbranch', 's_branch', 's_waitcnt', 's_barrier', 's_endpgm', 's_sleep', 's_setprio', 's_bitcmp')):
                s.src = set().union(*[regs_of(o) for o in ops]) if ops else set()
            else:
                s.dst = regs_of(ops[0]); s.src = set().union(*[regs_of(o) for o in ops[1:]]) if len(ops) > 1 else set()
                if 'saveexec' in op: s.dst |= {('exec', 0)}
            return
        raise ValueError('unknown instruction: ' + text)

def isv(r): return r[0] in ('v', 'a')
def iss(r): return r[0] in ('s', 'vcc')

def required(prev, cur):
    n = 0
    if prev.kind == 'valu':
        vd = {r for r in prev.dst if isv(r)}; sd = {r for r in prev.dst if iss(r)}
        if cur.kind == 'mfma' and vd & cur.src: n = max(n, 2)
        if cur.kind == 'valu':
            if cur.dpp and vd & cur.src: n = max(n, 2)
            if cur.op.startswith('v_permlane') and vd & cur.src: n = max(n, 2)
            if cur.op.startswith(('v_readlane', 'v_readfirstlane')) and vd & cur.src: n = max(n, 1)
            if sd & cur.src: n = max(n, 4 if cur.op.startswith(('v_readlane', 'v_writelane')) else 2)
            if prev.op.startswith(TRANS) and vd & cur.src: n = max(n, 1)
            if ('exec', 0) in prev.dst: n = max(n, 5 if cur.dpp else 4)
            if ('op_sel' in prev.text or 'sdwa' in prev.text) and vd & (cur.src | cur.dst): n = max(n, 1)
        if cur.kind == 'vmem' and sd & cur.src: n = max(n, 5)
        if cur.kind == 'salu' and sd & cur.src: n = max(n, 2)
        if cur.kind == 'mfma' and ('exec', 0) in prev.dst: n = max(n, 4)
    if prev.kind == 'mfma':
        d = prev.dst
        if cur.kind == 'mfma':
            if d & cur.srcAB: n = max(n, 8)
            if d & cur.srcC and d != cur.srcC: n = max(n, 6)
            if d & cur.dst and d != cur.dst: n = max(n, 8)
        elif cur.kind in ('valu', 'vmem', 'ds'):
            if d & (cur.src | cur.dst): n = max(n, 8)
            if cur.kind == 'valu' and prev.srcC & cur.dst: n = max(n, 3)
    if prev.kind == 'vmem' and prev.wide and prev.store_data & cur.dst: n = max(n, 2)
    if prev.kind == 'salu' and ('m0', 0) in prev.dst and ('m0', 0) in cur.src and cur.kind in ('vmem', 'ds', 'valu'): n = max(n, 1)
    return n

class Asm:
    def __init__(s):
        s.lines = []; s.hist = []; s.nlabel = 0
    def raw(s, text): s.lines.append(text)
    def label(s, name):
        s.lines.append(name + ':')
    def newlabel(s, base='L'):
        s.nlabel += 1; return f'{base}_{s.nlabel}'
    def __call__(s, text):
        for ln in text.split('\n'):
            ln = ln.strip()
            if not ln or ln.startswith(';'):
                continue
            if ln.endswith(':'):
                s.label(ln[:-1]); continue
            ins = Ins(ln)
            need = 0; dist = 0
            for p in reversed(s.hist):
                r = required(p, ins)
                if r > dist: need = max(need, r - dist)
                dist += p.states
                if dist >= 9: break
            while need > 0:
                k = min(need, 16)
                nop = Ins(f's_nop {k-1}'); s.hist.append(nop); s.lines.append(f'  s_nop {k-1}'); need -= k
            s.hist.append(ins); s.hist = s.hist[-24:]
            s.lines.append('  ' + ln)
    def flush_hazards(s):
        s('s_nop 7')
    def text(s): return '\n'.join(s.lines) + '\n'
```

```python
import sys, struct
sys.path.insert(0, 'gen')
from asmlib import Asm

NAME = "adaLN_cond__gqa_block_cached__dense_activation_relu__decode"
def f2u(x): return struct.unpack('<I', struct.pack('<f', x))[0]

WS_EPOCH = 0x0
WS_MG = 0x1000
MG_B = 1728 * 8
WS_QP = 0x20000
WS_ST = 0xE0000
WS_OP = 0x100000
WS_YP = 0x180000
WS_X1 = 0x220000
WS_ZP = 0x240000
WS_DBG = 0x800000
WS_SIZE = 0x1000000
L_W = 0
L_WO = 73728
L_RB = 106496
L_HB = 118784
L_AB = 135168
L_RB2 = 139776
L_PT = 147456
L_OB = 155648
L_QB = 159744
L_TAG = L_QB + 512
L_CNT = L_QB + 576
L_H2 = L_PT
L_H1 = L_PT + 9344 + 16
L_RB2 = 126976 + 8192
L_AB = 135168
L_RB2 = 139776
assert L_RB2 + 8192 <= L_PT + 8192
LDS_BYTES = 163840
TAG_INC = 0x9E3779B9
SPIN_LIMIT = 300000
L2E = 1.4426950408889634
L2E_HI = struct.unpack('<f', struct.pack('<f', L2E))[0]
L2E_LO = L2E - L2E_HI
LN2 = 0.6931471805599453

sWAVE, sR, sPAIR, sHALF, sU = 3, 4, 5, 6, 7
sX, sK, sV, sWQ, sWO, sW1, sW2, sC, sWM, sOUT, sWS = 16, 18, 20, 22, 24, 28, 30, 32, 34, 36, 40
SRD_A, SRD_B, SRD_WS, SRD_X = 44, 48, 52, 56
sM1, sM2, sM3 = 60, 62, 64
sPEND = 66
sANY = 90; sCNT = 92; sT0 = 8
sP1, sP2, sWOT, sB1, sD, sMI = 93, 94, 95, 96, 97, 98
sST = 100

def build(debug=False):
    a = Asm()
    a.raw(f"; @launch grid=(256,1,1) block=(512,1,1) lds={LDS_BYTES}")
    a.raw('.amdgcn_target "amdgcn-amd-amdhsa--gfx950"')
    a.raw(".text"); a.raw(f".globl {NAME}_kernel"); a.raw(".p2align 8"); a.raw(f".type {NAME}_kernel,@function")
    a.raw(f"{NAME}_kernel:")

    def srd(n, base, size, off=None):
        if off is None:
            a(f"s_mov_b32 s{n}, s{base}\n s_mov_b32 s{n+1}, s{base+1}")
        else:
            a(f"s_add_u32 s{n}, s{base}, s{off}\n s_addc_u32 s{n+1}, s{base+1}, 0")
        a(f"s_mov_b32 s{n+2}, {size}\n s_mov_b32 s{n+3}, 0x20000")

    vDBG = {'S': 7, 'C': 7}
    def stamp(idx):
        if not debug: return
        a(f"s_memrealtime s[{sST}:{sST+1}]\n s_waitcnt lgkmcnt(0)\n v_writelane_b32 v7, s{sST}, {idx}")
    def dump_stamps():
        if not debug: return
        a(f"""s_mov_b32 exec_hi, 0
        s_lshl_b32 s8, s2, 3
        s_add_u32 s8, s8, s{sWAVE}
        s_lshl_b32 s8, s8, 7
        s_add_u32 s8, s8, {WS_DBG}
        v_and_b32 v6, 63, v0
        v_lshlrev_b32 v6, 2, v6
        buffer_store_dword v7, v6, s[{SRD_WS}:{SRD_WS+3}], s8 offen
        s_waitcnt vmcnt(0)""")

    def rnd(dst, src):
        a(f"v_cvt_pk_bf16_f32 v{dst}, v{src}, v{src}\n v_lshlrev_b32 v{dst}, 16, v{dst}")

    def gather(loads, vtag, mask=None, sleep=1):
        n = len(loads); assert n <= 12
        full = '-1' if mask is None else hex(mask)
        for j in range(n): a(f"s_mov_b64 s[{sPEND+2*j}:{sPEND+2*j+1}], {full}")
        a(f"s_mov_b32 s{sCNT}, {SPIN_LIMIT}")
        lp = a.newlabel('L_g'); done = a.newlabel('L_gd')
        a.label(lp)
        for j, (ins, _) in enumerate(loads):
            sk = a.newlabel('L_gs')
            a(f"s_mov_b64 exec, s[{sPEND+2*j}:{sPEND+2*j+1}]\n s_cbranch_execz {sk}\n {ins}")
            a.label(sk)
        a(f"s_mov_b64 exec, {full}\n s_mov_b64 s[{sANY}:{sANY+1}], 0\n s_waitcnt vmcnt(0)")
        for j, (_, tags) in enumerate(loads):
            p = f"s[{sPEND+2*j}:{sPEND+2*j+1}]"
            a(f"v_cmp_ne_u32 {p}, v{vtag}, v{tags[0]}")
            for t in tags[1:]:
                a(f"v_cmp_ne_u32 vcc, v{vtag}, v{t}\n s_or_b64 {p}, {p}, vcc")
        for j in range(n):
            a(f"s_or_b64 s[{sANY}:{sANY+1}], s[{sANY}:{sANY+1}], s[{sPEND+2*j}:{sPEND+2*j+1}]")
        a(f"""s_cmp_eq_u64 s[{sANY}:{sANY+1}], 0
        s_cbranch_scc1 {done}
        s_sub_u32 s{sCNT}, s{sCNT}, 1
        s_cmp_eq_u32 s{sCNT}, 0
        s_cbranch_scc1 {done}
        s_sleep {sleep}
        s_branch {lp}""")
        a.label(done)
        a("s_mov_b64 exec, -1")

    DPPQ = "row_mask:0xf bank_mask:0xf"
    def red8(op, v, t):
        a(f"{op}_dpp v{v}, v{v}, v{v} quad_perm:[1,0,3,2] {DPPQ}")
        a(f"{op}_dpp v{v}, v{v}, v{v} quad_perm:[2,3,0,1] {DPPQ}")
        a(f"{op}_dpp v{v}, v{v}, v{v} row_half_mirror {DPPQ}")
    def red32(op, v, t):
        red8(op, v, t)
        a(f"{op}_dpp v{v}, v{v}, v{v} row_mirror {DPPQ}")
        a(f"v_mov_b32 v{t}, v{v}\n v_permlane16_swap_b32 v{v}, v{t}\n {op} v{v}, v{v}, v{t}")

    a(f"""s_cmp_ge_u32 s2, 256
    s_cbranch_scc1 L_end
    s_load_dwordx16 s[16:31], s[0:1], 0
    s_load_dwordx8 s[32:39], s[0:1], 64
    s_load_dwordx2 s[40:41], s[0:1], 96
    v_lshrrev_b32 v1, 6, v0
    v_readfirstlane_b32 s{sWAVE}, v1
    s_and_b32 s8, s2, 7
    s_lshl_b32 s8, s8, 2
    s_lshr_b32 s8, 0x57136420, s8
    s_and_b32 s8, s8, 7
    s_andn2_b32 s{sR}, s2, 7
    s_or_b32 s{sR}, s{sR}, s8
    s_lshr_b32 s{sPAIR}, s{sR}, 1
    s_and_b32 s{sHALF}, s{sR}, 1
    v_and_b32 v4, 63, v0""")
    if debug: a("v_mov_b32 v7, 0")
    a(f"s_cmp_ge_u32 s{sWAVE}, 4\n s_cbranch_scc1 L_ctrl")

    vKO, vVO, vTAG = 1, 2, 3
    RING = 64
    def tile(slot, i): return RING + 32 * slot + 4 * i
    a(f"""v_bfe_u32 v5, v4, 2, 2
    v_lshlrev_b32 v5, 8, v5
    v_lshrrev_b32 v6, 4, v4
    v_lshlrev_b32 v6, 6, v6
    v_and_b32 v{vKO}, 3, v4
    v_lshlrev_b32 v{vKO}, 4, v{vKO}
    v_add3_u32 v{vKO}, v{vKO}, v5, v6
    v_lshlrev_b32 v{vVO}, 4, v4
    s_lshl_b32 s8, s{sWAVE}, 12
    v_add_u32 v{vKO}, s8, v{vKO}
    v_add_u32 v{vVO}, s8, v{vVO}
    s_lshl_b32 s9, s{sR}, 19
    s_waitcnt lgkmcnt(0)""")
    srd(SRD_A, sK, 0x80000, 9)
    srd(SRD_B, sV, 0x80000, 9)
    vm = []
    def issue(g):
        slot = g % 6
        isK = g < 16
        gg = g if isK else g - 16
        for i in range(8):
            if i % 4 == 0: a(f"s_mov_b32 s10, {(2*gg + i//4) * 16384}")
            t = tile(slot, i)
            a(f"buffer_load_dwordx4 v[{t}:{t+3}], v{vKO if isK else vVO}, s[{SRD_A if isK else SRD_B}:{(SRD_A if isK else SRD_B)+3}], s10 offen offset:{(i%4)*1024} nt")
            vm.append(('g', g))
    def wait_for(key):
        last = max(i for i, k in enumerate(vm) if k == key)
        n = len(vm) - 1 - last
        assert n <= 63
        a(f"s_waitcnt vmcnt({n})")
    stamp(0)
    issue(0); issue(1)
    srd(SRD_WS, sWS, WS_SIZE)
    a("s_barrier")
    a(f"""s_mov_b32 s{sM1}, 0x22222222
    s_mov_b32 s{sM1+1}, 0x22222222
    s_mov_b32 s{sM2}, 0x44444444
    s_mov_b32 s{sM2+1}, 0x44444444
    s_mov_b32 s{sM3}, 0x88888888
    s_mov_b32 s{sM3+1}, 0x88888888""")
    for g in range(2, 6):
        wait_for(('g', g - 2)); issue(g)
    stamp(1)
    a("s_barrier")
    stamp(2)
    a(f"""v_bfe_u32 v5, v4, 3, 1
    v_lshlrev_b32 v5, 8, v5
    v_lshrrev_b32 v6, 4, v4
    v_lshlrev_b32 v6, 6, v6
    v_and_b32 v16, 3, v4
    v_lshlrev_b32 v16, 4, v16
    v_add3_u32 v5, v5, v6, v16
    v_mov_b32 v6, {L_TAG}
    ds_read_b128 v[16:19], v5 offset:0
    """.replace("offset:0", "") if False else f"""v_bfe_u32 v5, v4, 3, 1
    v_lshlrev_b32 v5, 8, v5
    v_lshrrev_b32 v6, 4, v4
    v_lshlrev_b32 v6, 6, v6
    v_and_b32 v16, 3, v4
    v_lshlrev_b32 v16, 4, v16
    v_add3_u32 v5, v5, v6, v16
    v_add_u32 v5, {L_QB}, v5
    v_mov_b32 v6, {L_TAG}
    ds_read_b128 v[16:19], v5
    ds_read_b32 v{vTAG}, v6
    v_and_b32 v20, 4, v4
    v_cmp_eq_u32 vcc, 0, v20
    s_waitcnt lgkmcnt(0)""")
    for i in range(4):
        a(f"v_cndmask_b32 v{8+i}, 0, v{16+i}, vcc")
    for i in range(4):
        a(f"v_cndmask_b32 v{12+i}, v{16+i}, 0, vcc" .replace(f"v{16+i}, 0, vcc", f"v{16+i}, v21, vcc") if False else f"v_sub_u32 v{12+i}, v{16+i}, v{8+i}")
    a(f"s_mov_b32 s11, {f2u(128 ** -0.5)}")
    def kproc(g, nxt):
        slot = g % 6
        wait_for(('g', g))
        for ac in range(4):
            t = tile(slot, 2 * ac)
            a(f"v_mfma_f32_16x16x32_bf16 v[{16+4*ac}:{19+4*ac}], v[8:11], v[{t}:{t+3}], 0")
        for ac in range(4):
            t = tile(slot, 2 * ac + 1)
            a(f"v_mfma_f32_16x16x32_bf16 v[{16+4*ac}:{19+4*ac}], v[12:15], v[{t}:{t+3}], v[{16+4*ac}:{19+4*ac}]")
        if nxt is not None: issue(nxt)
        for ac in range(4):
            a(f"v_mov_b32_dpp v{48+ac}, v{16+4*ac} quad_perm:[0,0,0,0] {DPPQ}")
        for c in range(1, 4):
            for ac in range(4):
                a(f"v_add_f32_dpp v{48+ac}, v{16+4*ac+c}, v{48+ac} quad_perm:[{c},{c},{c},{c}] {DPPQ}")
        a(f"""v_cndmask_b32 v48, v48, v49, s[{sM1}:{sM1+1}]
        v_cndmask_b32 v50, v50, v51, s[{sM3}:{sM3+1}]
        v_cndmask_b32 v48, v48, v50, s[14:15]""")
        rnd(48, 48)
        a(f"v_mul_f32 v48, s11, v48")
        rnd(32 + g, 48)
    a(f"s_mov_b32 s14, 0xcccccccc\n s_mov_b32 s15, 0xcccccccc")
    sched = {0: 6, 1: 7}
    for g in range(6, 15): sched[g] = g + 2
    for g in range(16):
        kproc(g, sched.get(g))
    stamp(3)
    a("v_max3_f32 v48, v32, v33, v34")
    for i in range(35, 47, 2): a(f"v_max3_f32 v48, v48, v{i}, v{i+1}")
    a("v_max_f32 v48, v48, v47")
    red32("v_max_f32", 48, 49)
    a(f"s_mov_b32 s12, {f2u(L2E)}")
    for i in range(16):
        a(f"v_sub_f32 v{16+i}, v{32+i}, v48")
    for i in range(16):
        a(f"v_mul_f32 v{16+i}, s12, v{16+i}")
    for i in range(16):
        a(f"v_exp_f32 v{16+i}, v{16+i}")
    for st in (8, 4, 2, 1):
        for i in range(st): a(f"v_add_f32 v{16+i}, v{16+i}, v{16+i+st}")
    a("v_mov_b32 v50, v16")
    red32("v_add_f32", 50, 49)
    a(f"""v_mov_b32 v49, v{vTAG}
    v_mov_b32 v51, v{vTAG}
    v_lshrrev_b32 v5, 5, v4
    v_lshlrev_b32 v5, 4, v5
    s_lshl_b32 s8, s{sR}, 7
    s_lshl_b32 s9, s{sWAVE}, 5
    s_add_u32 s8, s8, s9
    s_add_u32 s8, s8, {WS_ST}
    s_mov_b32 exec_lo, 1
 s_mov_b32 exec_hi, 1
    buffer_store_dwordx4 v[48:51], v5, s[{SRD_WS}:{SRD_WS+3}], s8 offen sc1
    s_mov_b64 exec, -1""")
    vm.append(('st', 0))
    a(f"""v_and_b32 v6, 7, v4
    v_lshlrev_b32 v6, 5, v6
    v_add_u32 v6, v6, v5
    s_lshl_b32 s13, s{sPAIR}, 8
    s_add_u32 s13, s13, {WS_ST}""")
    issue(17)
    wait_for(('g', 16)); issue(18)
    wait_for(('g', 17)); issue(19)
    wait_for(('g', 18))
    a(f"buffer_load_dwordx4 v[52:55], v6, s[{SRD_WS}:{SRD_WS+3}], s13 offen sc1"); vm.append(('poll', 1))
    issue(20)
    wait_for(('g', 19))
    a(f"buffer_load_dwordx4 v[56:59], v6, s[{SRD_WS}:{SRD_WS+3}], s13 offen sc1"); vm.append(('poll', 2))
    issue(21)
    wait_for(('poll', 1))
    a(f"""v_cmp_ne_u32 vcc, v{vTAG}, v53
    v_cmp_ne_u32 s[8:9], v{vTAG}, v55
    s_or_b64 vcc, vcc, s[8:9]
    s_cbranch_vccz L_stat_ok""")
    wait_for(('poll', 2))
    a(f"""v_mov_b32 v52, v56
    v_mov_b32 v53, v57
    v_mov_b32 v54, v58
    v_mov_b32 v55, v59
    v_cmp_ne_u32 vcc, v{vTAG}, v53
    v_cmp_ne_u32 s[8:9], v{vTAG}, v55
    s_or_b64 vcc, vcc, s[8:9]
    s_cbranch_vccz L_stat_ok""")
    gather([(f"buffer_load_dwordx4 v[52:55], v6, s[{SRD_WS}:{SRD_WS+3}], s13 offen sc1", [53, 55])], vTAG)
    a.label("L_stat_ok")
    a("s_nop 1")
    stamp(4)
    a("v_mov_b32 v48, v52")
    red8("v_max_f32", 48, 49)
    a(f"""v_sub_f32 v50, v52, v48
    v_mul_f32 v50, s12, v50
    v_exp_f32 v50, v50
    v_mul_f32 v50, v50, v54""")
    red8("v_add_f32", 50, 49)
    a("v_rcp_f32 v51, v50")
    a("v_fma_f32 v49, -v50, v51, 1.0\n v_fma_f32 v51, v49, v51, v51")
    for i in range(16): a(f"v_sub_f32 v{32+i}, v{32+i}, v48")
    for i in range(16): a(f"v_mul_f32 v{32+i}, s12, v{32+i}")
    for i in range(16): a(f"v_exp_f32 v{32+i}, v{32+i}")
    for i in range(16): a(f"v_mul_f32 v{32+i}, v{32+i}, v51")
    for i in range(16): a(f"v_cvt_pk_bf16_f32 v{32+i}, v{32+i}, v{32+i}")
    a(f"""v_lshrrev_b32 v5, 5, v4
    v_lshlrev_b32 v5, 6, v5
    v_bfe_u32 v6, v4, 2, 2
    v_lshlrev_b32 v6, 4, v6
    v_add_u32 v5, v5, v6
    v_and_b32 v6, 3, v4
    v_lshlrev_b32 v6, 2, v6
    v_add_u32 v5, v5, v6
    v_bfe_u32 v6, v4, 4, 1
    v_lshlrev_b32 v6, 1, v6
    v_add_u32 v5, v5, v6
    s_lshl_b32 s8, s{sWAVE}, 11
    s_add_u32 s8, s8, {L_PT}
    v_add_u32 v5, s8, v5""")
    for i in range(16): a(f"ds_write_b16 v5, v{32+i} offset:{i*128}")
    a(f"""v_and_b32 v6, 1, v4
    v_lshlrev_b32 v6, 6, v6
    v_lshrrev_b32 v5, 4, v4
    v_lshlrev_b32 v5, 4, v5
    v_add3_u32 v5, v5, v6, s8
    s_mov_b32 s8, 0x05040100
    s_mov_b32 s9, 0x07060302
    s_waitcnt lgkmcnt(0)
    ds_read_b128 v[8:11], v5""")
    def vproc(g, nxt):
        slot = g % 6; j = g - 16
        pa = 8 + 4 * (j % 2)
        wait_for(('g', g))
        def perms(w4):
            T = 16 + 8 * (w4 % 2)
            for u in range(4):
                a(f"v_perm_b32 v{T+u}, v{tile(slot,2*u+1)+w4}, v{tile(slot,2*u)+w4}, s8")
            for u in range(4):
                a(f"v_perm_b32 v{T+4+u}, v{tile(slot,2*u+1)+w4}, v{tile(slot,2*u)+w4}, s9")
        def mf(w4):
            T = 16 + 8 * (w4 % 2)
            for h in range(2):
                ac = 32 + 4 * (2 * w4 + h)
                c = "0" if j == 0 else f"v[{ac}:{ac+3}]"
                a(f"v_mfma_f32_16x16x32_bf16 v[{ac}:{ac+3}], v[{pa}:{pa+3}], v[{T+4*h}:{T+4*h+3}], {c}")
        perms(0); perms(1)
        a("s_waitcnt lgkmcnt(0)")
        if j + 1 < 16:
            pn = 8 + 4 * ((j + 1) % 2)
            a(f"ds_read_b128 v[{pn}:{pn+3}], v5 offset:{(j+1)*128}")
        mf(0); perms(2); mf(1); perms(3)
        if nxt is not None: issue(nxt)
        mf(2)
        if j == 0: wait_for(('poll', 2))
        mf(3)
    vs = {16: 22, 17: 23}
    for g in range(22, 30): vs[g] = g + 2
    for g in range(16, 32):
        vproc(g, vs.get(g))
    stamp(5)
    a(f"""v_lshlrev_b32 v5, 5, v4
    s_lshl_b32 s8, s{sWAVE}, 10
    s_add_u32 s8, s8, {L_OB}
    v_add_u32 v5, s8, v5
    s_mov_b64 exec, 0xffff""")
    for e in range(8):
        a(f"ds_write2_b32 v5, v{32+4*e}, v{33+4*e} offset0:{e} offset1:{128+e}")
    a("s_mov_b64 exec, -1\n s_waitcnt lgkmcnt(0)\n s_barrier")
    dump_stamps()
    a("s_endpgm")

    a.label("L_ctrl")
    vT = 3
    a(f"""s_setprio 3
    s_sub_u32 s{sWAVE}, s{sWAVE}, 4
    s_mov_b32 s{sP1}, -1
    s_mov_b32 s{sP2}, -1
    s_mov_b32 s{sWOT}, -1
    s_mov_b32 s{sB1}, -1
    s_mov_b32 s{sD}, -1
    s_mov_b32 s{sMI}, -1
    s_mov_b32 s{sU}, s{sPAIR}
    s_cmp_eq_u32 s{sHALF}, 0
    s_cbranch_scc1 L_role_u
    s_cmp_lt_u32 s{sPAIR}, 72
    s_cbranch_scc0 L_role_u1
    s_mov_b32 s{sMI}, s{sPAIR}
    s_branch L_role_done
    L_role_u1:
    s_add_u32 s{sU}, s{sPAIR}, 56
    L_role_u:
    s_cmp_lt_u32 s{sU}, 144
    s_cselect_b32 s{sWOT}, s{sU}, -1
    ; D tasks
    s_cmp_eq_u32 s{sWAVE}, 1
    s_cselect_b32 s{sD}, s{sU}, -1
    s_cmp_eq_u32 s{sWAVE}, 2
    s_cbranch_scc0 L_role_d
    s_add_u32 s8, s{sU}, 184
    s_cmp_lt_u32 s{sU}, 104
    s_cselect_b32 s{sD}, s8, -1
    L_role_d:
    s_cmp_lt_u32 s{sU}, 72
    s_cbranch_scc0 L_role_72
    s_cmp_eq_u32 s{sWAVE}, 0
    s_cselect_b32 s{sP2}, s{sU}, -1
    s_cselect_b32 s{sB1}, s{sU}, -1
    s_branch L_role_done
    L_role_72:
    s_cmp_lt_u32 s{sU}, 128
    s_cbranch_scc0 L_role_128
    s_lshl_b32 s8, s{sU}, 1
    s_sub_u32 s8, s8, 72
    s_add_u32 s8, s8, s{sWAVE}
    s_cmp_lt_u32 s{sWAVE}, 2
    s_cselect_b32 s{sP2}, s8, -1
    s_branch L_role_done
    L_role_128:
    s_cmp_lt_u32 s{sU}, 182
    s_cbranch_scc0 L_role_182
    s_sub_u32 s8, 181, s{sU}
    s_cmp_lt_u32 s{sWAVE}, 3
    s_cselect_b32 s{sP1}, s8, -1
    s_branch L_role_done
    L_role_182:
    s_sub_u32 s8, s{sU}, 182
    s_lshl_b32 s8, s8, 2
    s_add_u32 s8, s8, 184
    s_add_u32 s{sP2}, s8, s{sWAVE}
    L_role_done:
    s_waitcnt lgkmcnt(0)""")
    srd(SRD_WS, sWS, WS_SIZE)
    srd(SRD_X, sX, 8 * 1152)
    stamp(0)
    a(f"""v_mov_b32 v5, 0
    buffer_load_dword v{vT}, v5, s[{SRD_WS}:{SRD_WS+3}], 0 offen sc1
    v_mov_b32 v6, {L_CNT}
    ds_write_b32 v6, v5
    v_lshrrev_b32 v8, 3, v4
    v_and_b32 v9, 7, v4
    v_lshlrev_b32 v9, 4, v9""")
    a(f"""v_lshrrev_b32 v10, 4, v4
    v_lshlrev_b32 v10, 3, v10
    v_bfe_u32 v11, v4, 2, 2
    v_add_u32 v11, v10, v11
    v_lshlrev_b32 v10, 7, v11
    v_and_b32 v12, 3, v4
    v_lshlrev_b32 v12, 3, v12
    v_add_u32 v10, v10, v12""")

    def dma_rows(srd_n, pitch, nins, s_off, s_lds, pace=None):
        for i in range(nins):
            if pace is not None and i >= pace and i % 4 == 0: a(f"s_waitcnt vmcnt({pace})")
            a(f"s_mov_b32 m0, s{s_lds}\n s_add_u32 s{s_lds}, s{s_lds}, 1024")
            a(f"buffer_load_dwordx4 v13, s[{srd_n}:{srd_n+3}], s{s_off} offen nt lds")
            a(f"s_add_u32 s{s_off}, s{s_off}, {8*pitch}")

    def wo_dma():
        srd(SRD_B, sWO, 4096 * 1152)
        a(f"""s_mul_i32 s8, s{sWOT}, 57
        s_lshr_b32 s8, s8, 9
        s_mul_i32 s9, s8, 9
        s_sub_u32 s9, s{sWOT}, s9
        s_lshl_b32 s8, s8, 8
        s_lshl_b32 s10, s{sWAVE}, 6
        s_add_u32 s8, s8, s10
        s_mul_i32 s8, s8, 1152
        s_lshl_b32 s9, s9, 7
        s_add_u32 s8, s8, s9
        s_lshl_b32 s9, s{sWAVE}, 13
        s_add_u32 s9, s9, {L_WO}
        v_mul_u32_u24 v13, 1152, v8
        v_add_u32 v13, v13, v9""")
        dma_rows(SRD_B, 1152, 8, 8, 9)

    a(f"s_cmp_eq_u32 s{sP1}, -1\n s_cbranch_scc1 L_noP1a")
    srd(SRD_A, sC, 8 * 1152)
    srd(SRD_B, sWM, 576 * 6912)
    a(f"""v_and_b32 v14, 7, v4
    v_mul_u32_u24 v14, 1152, v14
    v_bfe_u32 v15, v4, 3, 1
    v_mul_u32_u24 v15, 192, v15
    v_add_u32 v14, v14, v15
    v_lshrrev_b32 v15, 4, v4
    v_lshlrev_b32 v15, 4, v15
    v_add_u32 v14, v14, v15
    s_mul_i32 s8, s{sWAVE}, 384""")
    for s_ in range(3):
        a(f"buffer_load_dwordx4 v[{16+4*s_}:{19+4*s_}], v14, s[{SRD_A}:{SRD_A+3}], s8 offen offset:{64*s_}")
    a(f"""v_mul_u32_u24 v13, 6912, v8
    v_add_u32 v13, v13, v9
    s_mul_i32 s8, s{sWAVE}, {192*6912}
    s_lshl_b32 s9, s{sP1}, 7
    s_add_u32 s8, s8, s9
    s_mul_i32 s9, s{sWAVE}, 24576""")
    dma_rows(SRD_B, 6912, 24, 8, 9)
    a.label("L_noP1a")
    a(f"s_cmp_eq_u32 s{sP2}, -1\n s_cbranch_scc1 L_noP2a")
    srd(SRD_B, sWQ, 576 * 8192)
    a(f"v_mul_u32_u24 v14, 1152, v8\n v_add_u32 v14, v14, v9")
    for i in range(9):
        a(f"buffer_load_dwordx4 v[{32+4*i}:{35+4*i}], v14, s[{SRD_X}:{SRD_X+3}], 0 offen offset:{128*i}")
    for i in range(6):
        for idn in range(64 * i, 64 * i + 64): assert (idn * 1366) >> 16 == idn // 48
        a(f"""v_add_u32 v14, {64*i}, v4
        v_mul_u32_u24 v{80+i}, 1366, v14
        v_lshrrev_b32 v{80+i}, 16, v{80+i}
        v_mul_u32_u24 v15, 48, v{80+i}
        v_sub_u32 v{86+i}, v14, v15""")
    a(f"s_lshr_b32 s12, s{sP2}, 6\n s_mul_i32 s8, s12, 384")
    for i in range(6):
        a(f"""v_mul_u32_u24 v14, 1152, v{80+i}
        v_lshlrev_b32 v15, 3, v{86+i}
        v_add_u32 v14, v14, v15
        buffer_load_dwordx2 v[{68+2*i}:{69+2*i}], v14, s[{SRD_X}:{SRD_X+3}], s8 offen""")
    a(f"""v_lshlrev_b32 v13, 13, v8
    v_add_u32 v13, v13, v9
    s_mul_i32 s8, s12, {192*8192}
    s_and_b32 s9, s{sP2}, 63
    s_lshl_b32 s9, s9, 7
    s_add_u32 s8, s8, s9
    s_mul_i32 s9, s{sWAVE}, 24576""")
    dma_rows(SRD_B, 8192, 24, 8, 9)
    a.label("L_noP2a")
    a("s_waitcnt lgkmcnt(0)\n s_barrier")
    a(f"s_cmp_eq_u32 s{sMI}, -1\n s_cbranch_scc1 L_noMa\n s_cmp_eq_u32 s{sWAVE}, 3\n s_cbranch_scc1 L_noMa")
    srd(SRD_A, sW1, 576 * 9216)
    srd(SRD_B, sW2, 4608 * 1152)
    a(f"""v_mul_u32_u24 v13, 9216, v8
    v_add_u32 v13, v13, v9
    s_mul_i32 s8, s{sWAVE}, {192*9216}
    s_lshl_b32 s9, s{sMI}, 7
    s_add_u32 s8, s8, s9
    s_mul_i32 s9, s{sWAVE}, 24576""")
    dma_rows(SRD_A, 9216, 24, 8, 9, pace=4)
    a(f"""v_lshlrev_b32 v13, 4, v4
    s_mul_i32 s8, s{sMI}, 73728
    s_mul_i32 s9, s{sWAVE}, 24576
    s_add_u32 s8, s8, s9
    s_add_u32 s9, s9, 73728""")
    dma_rows(SRD_B, 128, 24, 8, 9, pace=0) if False else None
    for i in range(24):
        if i % 4 == 0: a("s_waitcnt vmcnt(4)")
        a(f"s_mov_b32 m0, s9\n s_add_u32 s9, s9, 1024\n buffer_load_dwordx4 v13, s[{SRD_B}:{SRD_B+3}], s8 offen nt lds\n s_add_u32 s8, s8, 1024")
    a.label("L_noMa")
    a(f"s_cmp_eq_u32 s{sWOT}, -1\n s_cbranch_scc1 L_noWOa\n s_cmp_lg_u32 s{sP1}, -1\n s_cbranch_scc1 L_noWOa")
    wo_dma()
    a.label("L_noWOa")

    a(f"s_cmp_eq_u32 s{sP1}, -1\n s_cbranch_scc1 L_noP1b")
    a("s_waitcnt vmcnt(24)")
    a(f"""s_mov_b32 s8, {f2u(-L2E_HI)}
    s_mov_b32 s9, {f2u(-L2E_LO)}
    s_mov_b32 s10, {f2u(LN2)}
    s_mov_b32 s11, {f2u(127.5)}
    s_add_u32 s12, 0, 0""")
    a(f"v_add_u32 v{vT}, {TAG_INC}, v{vT}")
    for d in range(12):
        X = [32, 33]; TH = [34, 35]; TL = [36, 37]; E = [38, 39]; Y = [40, 41]
        a(f"v_lshlrev_b32 v32, 16, v{16+d}\n v_and_b32 v33, 0xffff0000, v{16+d}")
        for k in range(2): a(f"v_mul_f32 v{TH[k]}, s8, v{X[k]}")
        for k in range(2): a(f"v_fma_f32 v{TL[k]}, s8, v{X[k]}, -v{TH[k]}")
        for k in range(2): a(f"v_fma_f32 v{TL[k]}, s9, v{X[k]}, v{TL[k]}")
        for k in range(2): a(f"v_min_f32 v{TH[k]}, s11, v{TH[k]}")
        for k in range(2): a(f"v_exp_f32 v{E[k]}, v{TH[k]}")
        for k in range(2): a(f"v_mul_f32 v{TL[k]}, s10, v{TL[k]}")
        for k in range(2): a(f"v_fma_f32 v{E[k]}, v{E[k]}, v{TL[k]}, v{E[k]}")
        for k in range(2): a(f"v_add_f32 v{E[k]}, 1.0, v{E[k]}")
        for k in range(2): a(f"v_rcp_f32 v{TH[k]}, v{E[k]}")
        for k in range(2): a(f"v_mul_f32 v{Y[k]}, v{X[k]}, v{TH[k]}")
        for k in range(2): a(f"v_fma_f32 v{TL[k]}, -v{Y[k]}, v{E[k]}, v{X[k]}")
        for k in range(2): a(f"v_fma_f32 v{Y[k]}, v{TL[k]}, v{TH[k]}, v{Y[k]}")
        a(f"v_cvt_pk_bf16_f32 v{16+d}, v40, v41")
    a(f"s_mul_i32 s8, s{sWAVE}, 24576\n v_add_u32 v14, s8, v10\n s_waitcnt vmcnt(0)")
    stamp(1)
    for s_ in range(6):
        for jn in range(4):
            r = 64 + 16 * s_ + 4 * jn
            a(f"ds_read_b64_tr_b16 v[{r}:{r+1}], v14 offset:{s_*4096 + jn*32}")
            a(f"ds_read_b64_tr_b16 v[{r+2}:{r+3}], v14 offset:{s_*4096 + jn*32 + 512}")
        if s_ % 2 == 1: a("s_waitcnt lgkmcnt(0)") if s_ < 5 else None
    a("s_waitcnt lgkmcnt(0)")
    for s_ in range(6):
        hi = s_ // 3
        for jn in range(4):
            r = 64 + 16 * s_ + 4 * jn; ac = 32 + 16 * hi + 4 * jn
            c = "0" if s_ % 3 == 0 else f"v[{ac}:{ac+3}]"
            a(f"v_mfma_f32_16x16x32_bf16 v[{ac}:{ac+3}], v[{16+4*(s_%3)}:{19+4*(s_%3)}], v[{r}:{r+3}], {c}")
    a(f"""s_mov_b32 s8, 0
    s_mov_b32 s9, -1
    v_lshrrev_b32 v14, 5, v4
    s_lshl_b32 s10, s{sWAVE}, 1
    v_add_u32 v14, s10, v14
    v_lshlrev_b32 v14, 11, v14
    v_bfe_u32 v15, v4, 4, 1
    v_lshlrev_b32 v15, 10, v15
    v_add_u32 v14, v14, v15
    v_and_b32 v15, 15, v4
    v_lshlrev_b32 v15, 2, v15
    v_add_u32 v14, v14, v15
    v_add_u32 v14, {L_RB}, v14""")
    for i in range(16): a(f"v_cndmask_b32 v{32+i}, v{32+i}, v{48+i}, s[8:9]")
    for jn in range(4):
        for r in range(4):
            a(f"ds_write_b32 v14, v{32+4*jn+r} offset:{r*256 + jn*64}")
    a(f"""v_mov_b32 v15, 1
    v_mov_b32 v6, {L_CNT}
    s_waitcnt lgkmcnt(0)
    s_mov_b64 exec, 1
    ds_add_rtn_u32 v15, v6, v15
    s_waitcnt lgkmcnt(0)
    s_mov_b64 exec, -1
    v_readfirstlane_b32 s8, v15
    s_cmp_eq_u32 s8, 2
    s_cbranch_scc0 L_P1_notlast""")
    a(f"v_lshlrev_b32 v14, 8, v8\n v_add_u32 v14, v14, v9\n v_add_u32 v14, {L_RB}, v14")
    for p in range(6):
        a(f"ds_read_b128 v[{32+8*p}:{35+8*p}], v14 offset:{p*2048}\n ds_read_b128 v[{36+8*p}:{39+8*p}], v14 offset:{p*2048+128}")
    a("s_waitcnt lgkmcnt(0)")
    for p in range(1, 6):
        for i in range(8): a(f"v_add_f32 v{32+i}, v{32+i}, v{32+8*p+i}")
    a(f"""v_cvt_pk_bf16_f32 v80, v32, v33
    v_mov_b32 v81, v{vT}
    v_cvt_pk_bf16_f32 v82, v34, v35
    v_mov_b32 v83, v{vT}
    v_cvt_pk_bf16_f32 v84, v36, v37
    v_mov_b32 v85, v{vT}
    v_cvt_pk_bf16_f32 v86, v38, v39
    v_mov_b32 v87, v{vT}
    v_mul_u32_u24 v14, {MG_B}, v8
    v_add_u32 v14, v14, v9
    s_lshl_b32 s8, s{sP1}, 8
    s_add_u32 s8, s8, {WS_MG}
    buffer_store_dwordx4 v[80:83], v14, s[{SRD_WS}:{SRD_WS+3}], s8 offen sc1
    buffer_store_dwordx4 v[84:87], v14, s[{SRD_WS}:{SRD_WS+3}], s8 offen offset:128 sc1""")
    a.label("L_P1_notlast")
    stamp(2)
    a(f"s_cmp_eq_u32 s{sWOT}, -1\n s_cbranch_scc1 L_tag_done")
    wo_dma()
    a("s_branch L_tag_done")
    a.label("L_noP1b")
    a(f"s_cmp_eq_u32 s{sP2}, -1\n s_cbranch_scc1 L_tag_other")

    a(f"s_cmp_eq_u32 s{sWOT}, -1\n s_cbranch_scc1 L_P2_w0\n s_waitcnt vmcnt(32)\n s_branch L_P2_w1")
    a.label("L_P2_w0"); a("s_waitcnt vmcnt(24)"); a.label("L_P2_w1")
    a(f"v_add_u32 v{vT}, {TAG_INC}, v{vT}\n v_mov_b32 v16, 0\n v_mov_b32 v17, 0")
    for d in range(36):
        a(f"v_lshlrev_b32 v18, 16, v{32+d}\n v_and_b32 v19, 0xffff0000, v{32+d}\n v_add_f32 v16, v16, v18\n v_add_f32 v17, v17, v19")
    a("v_add_f32 v16, v16, v17")
    red8("v_add_f32", 16, 17)
    a(f"v_mul_f32 v16, {f2u(1.0/576)}, v16\n v_mov_b32 v20, 0\n v_mov_b32 v21, 0")
    for d in range(36):
        a(f"""v_lshlrev_b32 v18, 16, v{32+d}
        v_and_b32 v19, 0xffff0000, v{32+d}
        v_sub_f32 v18, v18, v16
        v_sub_f32 v19, v19, v16
        v_fmac_f32 v20, v18, v18
        v_fmac_f32 v21, v19, v19""")
    a("v_add_f32 v20, v20, v21")
    red8("v_add_f32", 20, 21)
    def ln_finish(vm_, vv):
        a(f"v_mul_f32 v{vv}, {f2u(1.0/576)}, v{vv}")
        rnd(vm_, vm_); rnd(vv, vv)
        a(f"v_add_f32 v{vv}, {f2u(1e-5)}, v{vv}")
        rnd(vv, vv)
        a(f"v_sqrt_f32 v{vv}, v{vv}")
        rnd(vv, vv)
        a(f"v_rcp_f32 v{vv}, v{vv}")
    ln_finish(16, 20)
    a(f"""v_mov_b32 v17, v20
    s_lshl_b32 s13, s{sWAVE}, 12
    s_add_u32 s13, s13, {L_HB}
    v_lshlrev_b32 v14, 3, v8
    v_add_u32 v14, s13, v14
    ds_write_b64 v14, v[16:17] offset:3328
    s_waitcnt lgkmcnt(0)""")
    for i in range(6):
        a(f"v_lshlrev_b32 v14, 3, v{80+i}\n v_add_u32 v14, s13, v14\n ds_read_b64 v[{20+2*i}:{21+2*i}], v14 offset:3328")
    a("s_waitcnt lgkmcnt(0)")
    for i in range(6):
        for k in range(2):
            d = 68 + 2 * i + k
            a(f"""v_lshlrev_b32 v18, 16, v{d}
            v_and_b32 v19, 0xffff0000, v{d}
            v_sub_f32 v18, v18, v{20+2*i}
            v_sub_f32 v19, v19, v{20+2*i}
            v_cvt_pk_bf16_f32 v{d}, v18, v19
            v_lshlrev_b32 v18, 16, v{d}
            v_and_b32 v19, 0xffff0000, v{d}
            v_mul_f32 v18, v18, v{21+2*i}
            v_mul_f32 v19, v19, v{21+2*i}
            v_cvt_pk_bf16_f32 v{d}, v18, v19""")
    for i in range(6):
        a(f"""v_mul_u32_u24 v{92+i}, {MG_B}, v{80+i}
        v_lshlrev_b32 v14, 4, v{86+i}
        v_add_u32 v{92+i}, v{92+i}, v14
        v_mul_u32_u24 v{98+i}, 400, v{80+i}
        v_lshlrev_b32 v14, 3, v{86+i}
        v_add3_u32 v{98+i}, v{98+i}, v14, s13""")
    a(f"s_cmp_eq_u32 s{sWOT}, -1\n s_cbranch_scc1 L_P2_w2\n s_waitcnt vmcnt(8)\n s_branch L_P2_w3")
    a.label("L_P2_w2"); a("s_waitcnt vmcnt(0)"); a.label("L_P2_w3")
    a(f"s_mul_i32 s8, s{sWAVE}, 24576\n v_add_u32 v14, s8, v10")
    for s_ in range(6):
        for jn in range(4):
            r = 160 + 16 * s_ + 4 * jn
            a(f"ds_read_b64_tr_b16 v[{r}:{r+1}], v14 offset:{s_*4096 + jn*32}")
            a(f"ds_read_b64_tr_b16 v[{r+2}:{r+3}], v14 offset:{s_*4096 + jn*32 + 512}")
        if s_ % 2 == 1: a("s_waitcnt lgkmcnt(0)")
    stamp(1)
    a(f"s_lshr_b32 s12, s{sP2}, 6\n s_mul_i32 s15, s12, 768\n s_add_u32 s15, s15, {WS_MG}")
    loads = []
    for i in range(6):
        loads.append((f"buffer_load_dwordx4 v[{104+8*i}:{107+8*i}], v{92+i}, s[{SRD_WS}:{SRD_WS+3}], s15 offen sc1", [105+8*i, 107+8*i]))
        loads.append((f"buffer_load_dwordx4 v[{108+8*i}:{111+8*i}], v{92+i}, s[{SRD_WS}:{SRD_WS+3}], s15 offen offset:2304 sc1", [109+8*i, 111+8*i]))
    gather(loads, vT, sleep=4)
    stamp(2)
    def hcalc(dst, ln, c1src, sasrc):
        a(f"""v_lshlrev_b32 v18, 16, v{c1src}
        v_and_b32 v19, 0xffff0000, v{c1src}
        v_add_f32 v18, 1.0, v18
        v_add_f32 v19, 1.0, v19
        v_cvt_pk_bf16_f32 v20, v18, v19
        v_lshlrev_b32 v18, 16, v20
        v_and_b32 v19, 0xffff0000, v20
        v_lshlrev_b32 v21, 16, v{ln}
        v_and_b32 v22, 0xffff0000, v{ln}
        v_mul_f32 v18, v18, v21
        v_mul_f32 v19, v19, v22
        v_cvt_pk_bf16_f32 v20, v18, v19
        v_lshlrev_b32 v18, 16, v20
        v_and_b32 v19, 0xffff0000, v20
        v_lshlrev_b32 v21, 16, v{sasrc}
        v_and_b32 v22, 0xffff0000, v{sasrc}
        v_add_f32 v18, v18, v21
        v_add_f32 v19, v19, v22
        v_cvt_pk_bf16_f32 v{dst}, v18, v19""")
    for i in range(6):
        for k in range(2):
            hcalc(68 + 2 * i + k, 68 + 2 * i + k, 108 + 8 * i + 2 * k, 104 + 8 * i + 2 * k)
        a(f"ds_write_b64 v{98+i}, v[{68+2*i}:{69+2*i}]")
    a(f"""v_and_b32 v14, 7, v4
    v_mul_u32_u24 v14, 400, v14
    v_lshrrev_b32 v15, 4, v4
    v_lshlrev_b32 v15, 4, v15
    v_add3_u32 v14, v14, v15, s13
    s_waitcnt lgkmcnt(0)""")
    for s_ in range(6): a(f"ds_read_b128 v[{32+4*s_}:{35+4*s_}], v14 offset:{64*s_}")
    a("s_waitcnt lgkmcnt(0)")
    for s_ in range(6):
        for jn in range(4):
            r = 160 + 16 * s_ + 4 * jn; ac = 64 + 4 * jn
            c = "0" if s_ == 0 else f"v[{ac}:{ac+3}]"
            a(f"v_mfma_f32_16x16x32_bf16 v[{ac}:{ac+3}], v[{32+4*s_}:{35+4*s_}], v[{r}:{r+3}], {c}")
    a(f"""v_bfe_u32 v14, v4, 4, 1
    v_lshlrev_b32 v14, 17, v14
    v_and_b32 v15, 15, v4
    v_lshlrev_b32 v15, 3, v15
    v_add_u32 v14, v14, v15
    s_lshl_b32 s8, s12, 18
    s_and_b32 s9, s{sP2}, 63
    s_lshl_b32 s9, s9, 9
    s_add_u32 s8, s8, s9
    s_add_u32 s8, s8, {WS_QP}""")
    for i in range(16): a(f"v_mov_b32 v{105+2*i}, v{vT}")
    for i in range(16): a(f"v_mov_b32 v{104+2*i}, v{64+i}")
    a("s_mov_b32 exec_hi, 0")
    for r in range(4):
        for jn in range(4):
            i = 4 * jn + r
            a(f"buffer_store_dwordx2 v[{104+2*i}:{105+2*i}], v14, s[{SRD_WS}:{SRD_WS+3}], s8 offen offset:{jn*128} sc1")
        a("s_add_u32 s8, s8, 32768")
    a("s_mov_b64 exec, -1")
    stamp(3)
    a("s_branch L_tag_done")
    a.label("L_tag_other")
    a(f"s_waitcnt vmcnt(0)\n v_add_u32 v{vT}, {TAG_INC}, v{vT}")
    a.label("L_tag_done")

    a(f"s_cmp_eq_u32 s{sWAVE}, 3\n s_cbranch_scc0 L_noQ")
    a(f"v_mov_b32 v14, {WS_MG}")
    gather([(f"buffer_load_dwordx2 v[16:17], v14, s[{SRD_WS}:{SRD_WS+3}], 0 offen sc1", [17])], vT, mask=1, sleep=8)
    stamp(4)
    a(f"""s_lshr_b32 s8, s{sPAIR}, 4
    s_lshl_b32 s8, s8, 15
    s_and_b32 s9, s{sPAIR}, 15
    s_lshl_b32 s9, s9, 11
    s_add_u32 s8, s8, s9
    s_add_u32 s13, s8, {WS_QP}
    s_add_u32 s14, s13, 0x40000
    s_add_u32 s15, s13, 0x80000
    v_lshlrev_b32 v14, 4, v4""")
    loads = []
    for kt in range(3):
        for hh in range(2):
            r = 16 + 8 * kt + 4 * hh
            loads.append((f"buffer_load_dwordx4 v[{r}:{r+3}], v14, s[{SRD_WS}:{SRD_WS+3}], s{13+kt} offen offset:{1024*hh} sc1", [r+1, r+3]))
    gather(loads, vT, sleep=2)
    for hh in range(2):
        for k in range(2):
            r = 16 + 4 * hh + 2 * k
            a(f"v_add_f32 v{r}, v{r}, v{r+8}\n v_add_f32 v{r}, v{r}, v{r+16}")
        a(f"v_cvt_pk_bf16_f32 v{16+4*hh}, v{16+4*hh}, v{18+4*hh}")
    a(f"""v_lshlrev_b32 v14, 2, v4
    v_add_u32 v14, {L_QB}, v14
    ds_write_b32 v14, v16
    ds_write_b32 v14, v20 offset:256
    v_mov_b32 v14, {L_TAG}
    ds_write_b32 v14, v{vT}
    s_waitcnt lgkmcnt(0)""")
    stamp(5)
    a.label("L_noQ")
    a("s_barrier")

    a("v_lshrrev_b32 v24, 5, v4\n v_and_b32 v25, 31, v4")
    a(f"s_cmp_eq_u32 s{sB1}, -1\n s_cbranch_scc1 L_noB1a")
    a(f"""s_mul_i32 s8, s{sB1}, 57
    s_lshr_b32 s8, s8, 9
    s_mul_i32 s9, s8, 9
    s_sub_u32 s9, s{sB1}, s9
    s_mul_i32 s10, s8, 1152
    s_lshl_b32 s11, s9, 7
    s_add_u32 s10, s10, s11
    v_lshlrev_b32 v14, 2, v25
    buffer_load_dword v28, v14, s[{SRD_X}:{SRD_X+3}], s10 offen
    s_mul_i32 s13, s8, {MG_B}
    s_lshl_b32 s11, s9, 8
    s_add_u32 s13, s13, s11
    s_add_u32 s13, s13, {WS_MG + 576*8}
    v_lshlrev_b32 v14, 3, v25""")
    gather([(f"buffer_load_dwordx2 v[26:27], v14, s[{SRD_WS}:{SRD_WS+3}], s13 offen sc1", [27])], vT, sleep=4)
    a.label("L_noB1a")
    a(f"s_cmp_eq_u32 s{sD}, -1\n s_cbranch_scc1 L_noDa")
    a(f"""s_lshr_b32 s8, s{sD}, 3
    s_lshl_b32 s8, s8, 4
    s_and_b32 s9, s{sD}, 3
    s_lshl_b32 s9, s9, 2
    s_add_u32 s8, s8, s9
    v_bfe_u32 v34, v4, 1, 2
    v_add_u32 v34, s8, v34
    s_bfe_u32 s9, s{sD}, 0x10002
    s_lshl_b32 s9, s9, 2
    v_and_b32 v35, 1, v4
    v_lshlrev_b32 v35, 1, v35
    v_add_u32 v35, s9, v35
    v_lshrrev_b32 v14, 1, v34
    v_lshlrev_b32 v14, 3, v14
    v_mul_u32_u24 v15, {MG_B}, v35
    v_add_u32 v15, v15, v14
    v_add_u32 v16, {MG_B}, v15
    s_mov_b32 s13, {WS_MG + 1440*8}""")
    gather([(f"buffer_load_dwordx2 v[30:31], v15, s[{SRD_WS}:{SRD_WS+3}], s13 offen sc1", [31]),
            (f"buffer_load_dwordx2 v[32:33], v16, s[{SRD_WS}:{SRD_WS+3}], s13 offen sc1", [33])], vT, sleep=4)
    a.label("L_noDa")
    a(f"s_cmp_eq_u32 s{sMI}, -1\n s_cbranch_scc1 L_noMb")
    a(f"""s_lshl_b32 s8, s{sWAVE}, 1
    v_add_u32 v14, s8, v24
    v_mul_u32_u24 v14, {MG_B}, v14
    v_lshlrev_b32 v15, 3, v25
    v_add_u32 v14, v14, v15
    s_mov_b32 s13, {WS_MG + 864*8}
    s_mov_b32 s14, {WS_MG + 1152*8}""")
    gather([(f"buffer_load_dwordx2 v[{40+2*i}:{41+2*i}], v14, s[{SRD_WS}:{SRD_WS+3}], s13 offen offset:{256*i} sc1", [41+2*i]) for i in range(9)], vT, sleep=4)
    gather([(f"buffer_load_dwordx2 v[{58+2*i}:{59+2*i}], v14, s[{SRD_WS}:{SRD_WS+3}], s14 offen offset:{256*i} sc1", [59+2*i]) for i in range(9)], vT, sleep=4)
    for i in range(9):
        a(f"""v_lshlrev_b32 v18, 16, v{58+2*i}
        v_and_b32 v19, 0xffff0000, v{58+2*i}
        v_add_f32 v18, 1.0, v18
        v_add_f32 v19, 1.0, v19
        v_cvt_pk_bf16_f32 v{41+2*i}, v18, v19""")
    a.label("L_noMb")
    a("s_waitcnt vmcnt(0)")
    a(f"s_cmp_eq_u32 s{sWOT}, -1\n s_cbranch_scc1 L_noWOb")
    a(f"s_lshl_b32 s8, s{sWAVE}, 13\n s_add_u32 s8, s8, {L_WO}\n v_add_u32 v14, s8, v10")
    for s_ in range(2):
        for jn in range(4):
            r = 64 + 16 * s_ + 4 * jn
            a(f"ds_read_b64_tr_b16 v[{r}:{r+1}], v14 offset:{s_*4096 + jn*32}")
            a(f"ds_read_b64_tr_b16 v[{r+2}:{r+3}], v14 offset:{s_*4096 + jn*32 + 512}")
    a("s_waitcnt lgkmcnt(0)")
    a.label("L_noWOb")
    a(f"""s_lshl_b32 s8, s{sWAVE}, 8
    s_add_u32 s8, s8, {L_OB}
    v_lshlrev_b32 v14, 2, v4
    v_add_u32 v14, s8, v14
    v_lshlrev_b32 v15, 3, v4
    s_lshl_b32 s8, s{sR}, 11
    s_lshl_b32 s9, s{sWAVE}, 9
    s_add_u32 s8, s8, s9
    s_add_u32 s8, s8, {WS_OP}
    v_mov_b32 v21, v{vT}""")
    stamp(6)
    a("s_barrier")
    stamp(7)
    a(f"""ds_read_b32 v16, v14
    ds_read_b32 v17, v14 offset:1024
    ds_read_b32 v18, v14 offset:2048
    ds_read_b32 v19, v14 offset:3072
    s_waitcnt lgkmcnt(0)
    v_add_f32 v16, v16, v17
    v_add_f32 v18, v18, v19
    v_add_f32 v20, v16, v18
    buffer_store_dwordx2 v[20:21], v15, s[{SRD_WS}:{SRD_WS+3}], s8 offen sc1""")

    a(f"s_cmp_eq_u32 s{sWOT}, -1\n s_cbranch_scc1 L_noWOc")
    a(f"""s_mul_i32 s12, s{sWOT}, 57
    s_lshr_b32 s12, s12, 9
    s_lshl_b32 s8, s12, 12
    s_lshl_b32 s9, s{sWAVE}, 9
    s_add_u32 s8, s8, s9
    s_add_u32 s8, s8, {WS_OP}
    v_lshlrev_b32 v14, 11, v24
    v_lshlrev_b32 v15, 4, v25
    v_add3_u32 v14, v14, v15, s8""")
    for b in range(8): a(f"v_add_u32 v{96+b}, {b*65536}, v14")
    gather([(f"buffer_load_dwordx4 v[{104+4*b}:{107+4*b}], v{96+b}, s[{SRD_WS}:{SRD_WS+3}], 0 offen sc1", [105+4*b, 107+4*b]) for b in range(8)], vT)
    stamp(8)
    a(f"""s_mul_i32 s8, s{sWAVE}, 1152
    s_add_u32 s8, s8, {L_AB}
    v_mul_u32_u24 v14, 144, v24
    v_lshlrev_b32 v15, 2, v25
    v_add3_u32 v14, v14, v15, s8""")
    for bp in range(4):
        r0 = 104 + 8 * bp; r1 = r0 + 4
        a(f"v_permlane32_swap_b32 v{r0}, v{r1}\n v_permlane32_swap_b32 v{r0+2}, v{r1+2}")
    for bp in range(4):
        r0 = 104 + 8 * bp; r1 = r0 + 4
        a(f"v_add_f32 v{r0}, v{r0}, v{r1}\n v_add_f32 v{r0+2}, v{r0+2}, v{r1+2}\n v_cvt_pk_bf16_f32 v{r0}, v{r0}, v{r0+2}")
        a(f"ds_write_b32 v14, v{r0} offset:{288*bp}")
    a(f"""v_and_b32 v14, 7, v4
    v_mul_u32_u24 v14, 144, v14
    v_lshrrev_b32 v15, 4, v4
    v_lshlrev_b32 v15, 4, v15
    v_add3_u32 v14, v14, v15, s8
    s_waitcnt lgkmcnt(0)
    ds_read_b128 v[104:107], v14
    ds_read_b128 v[108:111], v14 offset:64
    v_bfe_u32 v14, v4, 4, 1
    v_lshlrev_b32 v14, 10, v14
    v_and_b32 v15, 15, v4
    v_lshlrev_b32 v15, 2, v15
    s_lshl_b32 s8, s{sWAVE}, 11
    s_add_u32 s8, s8, {L_RB2}
    v_add3_u32 v14, v14, v15, s8
    s_waitcnt lgkmcnt(0)""")
    for s_ in range(2):
        for jn in range(4):
            r = 64 + 16 * s_ + 4 * jn; ac = 112 + 4 * jn
            c = "0" if s_ == 0 else f"v[{ac}:{ac+3}]"
            a(f"v_mfma_f32_16x16x32_bf16 v[{ac}:{ac+3}], v[{104+4*s_}:{107+4*s_}], v[{r}:{r+3}], {c}")
    a("s_mov_b32 exec_hi, 0")
    for jn in range(4):
        for rp in range(2):
            a(f"ds_write2_b32 v14, v{112+4*jn+2*rp}, v{113+4*jn+2*rp} offset0:{128*rp + 16*jn} offset1:{128*rp + 64 + 16*jn}")
    a(f"""s_mov_b64 exec, -1
    s_lshl_b32 s8, s{sWAVE}, 9
    s_add_u32 s8, s8, {L_RB2}
    v_lshlrev_b32 v14, 8, v24
    v_lshlrev_b32 v15, 3, v25
    v_add3_u32 v14, v14, v15, s8
    s_lshl_b32 s8, s{sWOT}, 12
    s_lshl_b32 s9, s{sWAVE}, 10
    s_add_u32 s8, s8, s9
    s_add_u32 s8, s8, {WS_YP}
    v_lshlrev_b32 v15, 4, v4
    v_mov_b32 v113, v{vT}
    s_waitcnt lgkmcnt(0)
    s_barrier
    ds_read_b64 v[104:105], v14
    ds_read_b64 v[106:107], v14 offset:2048
    ds_read_b64 v[108:109], v14 offset:4096
    ds_read_b64 v[110:111], v14 offset:6144
    v_mov_b32 v115, v{vT}
    s_waitcnt lgkmcnt(0)
    v_add_f32 v104, v104, v106
    v_add_f32 v108, v108, v110
    v_add_f32 v105, v105, v107
    v_add_f32 v109, v109, v111
    v_add_f32 v112, v104, v108
    v_add_f32 v114, v105, v109
    buffer_store_dwordx4 v[112:115], v15, s[{SRD_WS}:{SRD_WS+3}], s8 offen sc1""")
    stamp(9)
    a.label("L_noWOc")

    a(f"s_cmp_eq_u32 s{sB1}, -1\n s_cbranch_scc1 L_noB1b")
    a(f"""s_mul_i32 s12, s{sB1}, 57
    s_lshr_b32 s12, s12, 9
    s_mul_i32 s9, s12, 9
    s_sub_u32 s11, s{sB1}, s9
    s_lshl_b32 s8, s11, 12
    s_lshl_b32 s9, s12, 9
    s_add_u32 s8, s8, s9
    s_add_u32 s8, s8, {WS_YP}
    v_mul_u32_u24 v14, 36864, v24
    v_lshlrev_b32 v15, 4, v25
    v_add3_u32 v14, v14, v15, s8""")
    for i in range(8): a(f"v_add_u32 v{96+i}, {i*73728}, v14")
    gather([(f"buffer_load_dwordx4 v[{104+4*i}:{107+4*i}], v{96+i}, s[{SRD_WS}:{SRD_WS+3}], 0 offen sc1", [105+4*i, 107+4*i]) for i in range(8)], vT)
    stamp(10)
    for st in (4, 2, 1):
        for i in range(st):
            a(f"v_add_f32 v{104+4*i}, v{104+4*i}, v{104+4*(i+st)}\n v_add_f32 v{106+4*i}, v{106+4*i}, v{106+4*(i+st)}")
    a(f"""v_mov_b32 v105, v104
    v_mov_b32 v107, v106
    v_permlane32_swap_b32 v104, v105
    v_permlane32_swap_b32 v106, v107
    v_add_f32 v104, v104, v105
    v_add_f32 v106, v106, v107
    v_cvt_pk_bf16_f32 v104, v104, v106
    v_lshlrev_b32 v18, 16, v104
    v_and_b32 v19, 0xffff0000, v104
    v_lshlrev_b32 v20, 16, v26
    v_and_b32 v21, 0xffff0000, v26
    v_mul_f32 v18, v18, v20
    v_mul_f32 v19, v19, v21
    v_cvt_pk_bf16_f32 v104, v18, v19
    v_lshlrev_b32 v18, 16, v104
    v_and_b32 v19, 0xffff0000, v104
    v_lshlrev_b32 v20, 16, v28
    v_and_b32 v21, 0xffff0000, v28
    v_add_f32 v18, v18, v20
    v_add_f32 v19, v19, v21
    v_cvt_pk_bf16_f32 v104, v18, v19
    v_mov_b32 v105, v{vT}
    s_mul_i32 s8, s12, 2304
    s_lshl_b32 s9, s11, 8
    s_add_u32 s8, s8, s9
    s_add_u32 s8, s8, {WS_X1}
    v_lshlrev_b32 v14, 3, v25
    s_mov_b32 exec_hi, 0
    buffer_store_dwordx2 v[104:105], v14, s[{SRD_WS}:{SRD_WS+3}], s8 offen sc1
    s_mov_b64 exec, -1""")
    stamp(11)
    a.label("L_noB1b")

    a(f"s_cmp_eq_u32 s{sMI}, -1\n s_cbranch_scc1 L_noMc")
    a(f"s_lshl_b32 s8, s{sWAVE}, 5\n v_add_u32 v14, s8, v10\n v_add_u32 v15, 0x9000, v14")
    for s_ in range(18):
        r = 112 + 4 * s_
        base = 14 if s_ < 9 else 15; so = (s_ % 9) * 4096
        a(f"ds_read_b64_tr_b16 v[{r}:{r+1}], v{base} offset:{so}\n ds_read_b64_tr_b16 v[{r+2}:{r+3}], v{base} offset:{so+512}")
        if s_ % 4 == 3: a("s_waitcnt lgkmcnt(0)")
    a(f"""v_mul_u32_u24 v14, 1152, v11
    v_add_u32 v14, v14, v12
    s_mul_i32 s8, s{sWAVE}, 288
    s_add_u32 s8, s8, 73728
    v_add_u32 v14, s8, v14
    s_waitcnt lgkmcnt(0)""")
    for t in range(9):
        for s_ in range(2):
            r = 184 + 8 * t + 4 * s_
            so = s_ * 32 * 1152 + t * 32
            a(f"ds_read_b64_tr_b16 v[{r}:{r+1}], v14 offset:{so}\n ds_read_b64_tr_b16 v[{r+2}:{r+3}], v14 offset:{so + 4*1152}")
        if t % 2 == 1: a("s_waitcnt lgkmcnt(0)")
    a(f"""s_lshl_b32 s8, s{sWAVE}, 1
    v_add_u32 v29, s8, v24
    v_mul_u32_u24 v14, 2304, v29
    v_lshlrev_b32 v15, 3, v25
    v_add_u32 v14, v14, v15
    v_mul_u32_u24 v29, 1168, v29
    v_lshlrev_b32 v15, 2, v25
    v_add_u32 v29, v29, v15
    v_add_u32 v29, {L_H2}, v29
    s_mov_b32 s13, {WS_X1}
    s_waitcnt lgkmcnt(0)
    s_barrier""")
    stamp(8)
    gather([(f"buffer_load_dwordx2 v[{58+2*i}:{59+2*i}], v14, s[{SRD_WS}:{SRD_WS+3}], s13 offen offset:{256*i} sc1", [59+2*i]) for i in range(9)], vT)
    stamp(9)
    for i in range(9):
        a(f"v_lshlrev_b32 v{76+2*i}, 16, v{58+2*i}\n v_and_b32 v{77+2*i}, 0xffff0000, v{58+2*i}")
    a("v_add_f32 v16, v76, v77\n v_add_f32 v17, v78, v79")
    for i in range(2, 9): a(f"v_add_f32 v16, v16, v{76+2*i}\n v_add_f32 v17, v17, v{77+2*i}")
    a("v_add_f32 v16, v16, v17")
    red32("v_add_f32", 16, 17)
    a(f"v_mul_f32 v16, {f2u(1.0/576)}, v16\n v_mov_b32 v20, 0\n v_mov_b32 v21, 0")
    for i in range(9):
        a(f"v_sub_f32 v18, v{76+2*i}, v16\n v_sub_f32 v19, v{77+2*i}, v16\n v_fmac_f32 v20, v18, v18\n v_fmac_f32 v21, v19, v19")
    a("v_add_f32 v20, v20, v21")
    red32("v_add_f32", 20, 21)
    ln_finish(16, 20)
    for i in range(9):
        a(f"""v_sub_f32 v18, v{76+2*i}, v16
        v_sub_f32 v19, v{77+2*i}, v16
        v_cvt_pk_bf16_f32 v22, v18, v19
        v_lshlrev_b32 v18, 16, v22
        v_and_b32 v19, 0xffff0000, v22
        v_mul_f32 v18, v18, v20
        v_mul_f32 v19, v19, v20
        v_cvt_pk_bf16_f32 v22, v18, v19
        v_lshlrev_b32 v18, 16, v22
        v_and_b32 v19, 0xffff0000, v22
        v_lshlrev_b32 v23, 16, v{41+2*i}
        v_and_b32 v26, 0xffff0000, v{41+2*i}
        v_mul_f32 v18, v18, v23
        v_mul_f32 v19, v19, v26
        v_cvt_pk_bf16_f32 v22, v18, v19
        v_lshlrev_b32 v18, 16, v22
        v_and_b32 v19, 0xffff0000, v22
        v_lshlrev_b32 v23, 16, v{40+2*i}
        v_and_b32 v26, 0xffff0000, v{40+2*i}
        v_add_f32 v18, v18, v23
        v_add_f32 v19, v19, v26
        v_cvt_pk_bf16_f32 v{58+i}, v18, v19
        ds_write_b32 v29, v{58+i} offset:{128*i}""")
    a(f"""v_and_b32 v14, 7, v4
    v_mul_u32_u24 v15, 1168, v14
    v_lshrrev_b32 v16, 4, v4
    v_lshlrev_b32 v16, 4, v16
    v_add_u32 v15, v15, v16
    v_add_u32 v15, {L_H2}, v15
    v_mul_u32_u24 v14, 144, v14
    v_add_u32 v14, v14, v16
    v_add_u32 v14, {L_H1}, v14
    s_waitcnt lgkmcnt(0)
    s_barrier""")
    for s_ in range(18): a(f"ds_read_b128 v[{36+4*s_}:{39+4*s_}], v15 offset:{64*s_}")
    a(f"""v_bfe_u32 v16, v4, 4, 1
    v_mul_u32_u24 v16, 576, v16
    v_and_b32 v17, 15, v4
    v_lshlrev_b32 v17, 1, v17
    s_lshl_b32 s8, s{sWAVE}, 5
    s_add_u32 s8, s8, {L_H1}
    v_add3_u32 v16, v16, v17, s8""")
    for s_ in range(18):
        a(f"s_waitcnt lgkmcnt({min(15, 17 - s_)})")
        ac = 28 + 4 * (s_ % 2)
        c = "0" if s_ < 2 else f"v[{ac}:{ac+3}]"
        a(f"v_mfma_f32_16x16x32_bf16 v[{ac}:{ac+3}], v[{36+4*s_}:{39+4*s_}], v[{112+4*s_}:{115+4*s_}], {c}")
    for r in range(4): a(f"v_add_f32 v{28+r}, v{28+r}, v{32+r}")
    for r in range(4): a(f"v_max_f32 v{28+r}, 0, v{28+r}")
    for r in range(4): a(f"v_cvt_pk_bf16_f32 v{28+r}, v{28+r}, v{28+r}")
    a("s_mov_b32 exec_hi, 0")
    for r in range(4): a(f"ds_write_b16 v16, v{28+r} offset:{144*r}")
    a(f"""s_mov_b64 exec, -1
    s_waitcnt lgkmcnt(0)
    s_barrier
    ds_read_b128 v[36:39], v14
    ds_read_b128 v[40:43], v14 offset:64
    v_bfe_u32 v15, v4, 4, 1
    v_lshlrev_b32 v15, 9, v15
    v_and_b32 v16, 15, v4
    v_lshlrev_b32 v16, 5, v16
    v_lshlrev_b32 v17, 4, v24
    v_add3_u32 v15, v15, v16, v17
    s_mul_i32 s8, s{sMI}, 36864
    s_mul_i32 s9, s{sWAVE}, 9216
    s_add_u32 s8, s8, s9
    s_add_u32 s8, s8, {WS_ZP}
    s_mov_b32 s10, 0
    s_mov_b32 s11, -1""")
    for t in range(9): a(f"v_mov_b32 v{113+4*t}, v{vT}\n v_mov_b32 v{115+4*t}, v{vT}")
    a("s_waitcnt lgkmcnt(0)")
    for s_ in range(2):
        for t in range(9):
            ac = 44 + 4 * t; r = 184 + 8 * t + 4 * s_
            c = "0" if s_ == 0 else f"v[{ac}:{ac+3}]"
            a(f"v_mfma_f32_16x16x32_bf16 v[{ac}:{ac+3}], v[{36+4*s_}:{39+4*s_}], v[{r}:{r+3}], {c}")
    for t in range(9):
        ac = 44 + 4 * t
        a(f"v_cndmask_b32 v{112+4*t}, v{ac}, v{ac+2}, s[10:11]\n v_cndmask_b32 v{114+4*t}, v{ac+1}, v{ac+3}, s[10:11]")
        if t % 4 == 0 and t: a("s_add_u32 s8, s8, 4096")
        a(f"buffer_store_dwordx4 v[{112+4*t}:{115+4*t}], v15, s[{SRD_WS}:{SRD_WS+3}], s8 offen offset:{(t%4)*1024} sc1")
    stamp(10)
    a.label("L_noMc")

    a(f"s_cmp_eq_u32 s{sD}, -1\n s_cbranch_scc1 L_noDb")
    a(f"""v_lshrrev_b32 v14, 1, v34
    v_lshlrev_b32 v14, 3, v14
    v_mul_u32_u24 v15, 2304, v35
    v_add_u32 v15, v15, v14
    s_mov_b32 s13, {WS_X1}""")
    gather([(f"buffer_load_dwordx2 v[36:37], v15, s[{SRD_WS}:{SRD_WS+3}], s13 offen sc1", [37]),
            (f"buffer_load_dwordx2 v[38:39], v15, s[{SRD_WS}:{SRD_WS+3}], s13 offen offset:2304 sc1", [39])], vT, mask=0xff, sleep=2)
    stamp(12)
    a(f"""s_lshl_b32 s8, s{sD}, 7
    s_add_u32 s8, s8, {WS_ZP}
    v_mul_u32_u24 v14, 36864, v8
    v_add3_u32 v14, v14, v9, s8""")
    for i in range(9): a(f"v_add_u32 v{96+i}, {i*8*36864}, v14")
    a("v_and_b32 v14, 1, v34\n v_cmp_eq_u32 vcc, 0, v14")
    for r in (36, 38, 30, 32):
        a(f"v_lshlrev_b32 v16, 16, v{r}\n v_and_b32 v17, 0xffff0000, v{r}\n v_cndmask_b32 v{r}, v17, v16, vcc")
    srd(SRD_A, sOUT, 4608 * 2)
    a(f"""v_mul_u32_u24 v15, 1152, v35
    v_lshlrev_b32 v14, 1, v34
    v_add_u32 v15, v15, v14""")
    gather([(f"buffer_load_dwordx4 v[{108+4*i}:{111+4*i}], v{96+i}, s[{SRD_WS}:{SRD_WS+3}], 0 offen sc1", [109+4*i, 111+4*i]) for i in range(9)], vT, sleep=2)
    stamp(13)
    a("v_add_f32 v108, v108, v140\n v_add_f32 v110, v110, v142")
    for st in (4, 2, 1):
        for i in range(st):
            a(f"v_add_f32 v{108+4*i}, v{108+4*i}, v{108+4*(i+st)}\n v_add_f32 v{110+4*i}, v{110+4*i}, v{110+4*(i+st)}")
    for r in (108, 110): a(f"v_add_f32_dpp v{r}, v{r}, v{r} row_ror:8 {DPPQ}")
    for sw in ("v_permlane16_swap_b32", "v_permlane32_swap_b32"):
        a(f"v_mov_b32 v109, v108\n v_mov_b32 v111, v110\n {sw} v108, v109\n {sw} v110, v111\n v_add_f32 v108, v108, v109\n v_add_f32 v110, v110, v111")
    for (y, gb, x1) in ((108, 30, 36), (110, 32, 38)):
        rnd(y, y)
        a(f"v_mul_f32 v{y}, v{y}, v{gb}")
        rnd(y, y)
        a(f"v_add_f32 v{y}, v{y}, v{x1}\n v_cvt_pk_bf16_f32 v{y}, v{y}, v{y}")
    a(f"""s_mov_b64 exec, 0xff
    buffer_store_short v108, v15, s[{SRD_A}:{SRD_A+3}], 0 offen
    buffer_store_short v110, v15, s[{SRD_A}:{SRD_A+3}], 0 offen offset:1152
    s_mov_b64 exec, -1
    s_cmp_eq_u32 s{sD}, 0
    s_cbranch_scc0 L_noDb
    v_mov_b32 v14, 0
    s_mov_b64 exec, 1
    buffer_store_dword v{vT}, v14, s[{SRD_WS}:{SRD_WS+3}], 0 offen sc1
    s_mov_b64 exec, -1""")
    a.label("L_noDb")
    stamp(14)
    if debug: a(f"s_add_u32 s{sWAVE}, s{sWAVE}, 4")
    dump_stamps()
    a.label("L_end")
    a("s_endpgm")
    a.raw('.section .rodata,"a"'); a.raw(".p2align 6"); a.raw(f".amdhsa_kernel {NAME}_kernel")
    for l in (".amdhsa_next_free_vgpr 256", ".amdhsa_next_free_sgpr 102", ".amdhsa_accum_offset 256",
              ".amdhsa_group_segment_fixed_size 0", ".amdhsa_kernarg_size 104", ".amdhsa_user_sgpr_count 2",
              ".amdhsa_user_sgpr_kernarg_segment_ptr 1", ".amdhsa_system_sgpr_workgroup_id_x 1"):
        a.raw("  " + l)
    a.raw(".end_amdhsa_kernel")
    return a.text()

if __name__ == "__main__":
    out = sys.argv[1] if len(sys.argv) > 1 else f"cdna_kernels/{NAME}.s"
    dbg = len(sys.argv) > 2 and sys.argv[2] == "debug"
    open(out, "w").write(build(dbg))
    for u in range(144): assert (u * 57) >> 9 == u // 9
```

```python
import sys, struct
sys.path.insert(0, 'gen')
from asmlib import Asm

NAME = "adaLN_cond__gqa_block_cached__dense_activation_relu__decode"
def f2u(x): return struct.unpack('<I', struct.pack('<f', x))[0]

WS_EPOCH = 0x0
WS_MG = 0x1000
MG_B = 1728 * 8
WS_QP = 0x20000
WS_ST = 0xE0000
WS_OP = 0x100000
WS_YP = 0x180000
WS_X1 = 0x220000
WS_ZP = 0x240000
WS_DBG = 0x800000
WS_SIZE = 0x1000000
L_W = 0
L_WO = 73728
L_RB = 106496
L_HB = 118784
L_AB = 135168
L_RB2 = 139776
L_PT = 147456
L_OB = 155648
L_QB = 159744
L_TAG = L_QB + 512
L_CNT = L_QB + 576
L_H2 = L_PT
L_H1 = L_PT + 9344 + 16
L_RB2 = 126976 + 8192
L_AB = 135168
L_RB2 = 139776
assert L_RB2 + 8192 <= L_PT + 8192
LDS_BYTES = 163840
TAG_INC = 0x9E3779B9
SPIN_LIMIT = 300000
L2E = 1.4426950408889634
L2E_HI = struct.unpack('<f', struct.pack('<f', L2E))[0]
L2E_LO = L2E - L2E_HI
LN2 = 0.6931471805599453

sWAVE, sR, sPAIR, sHALF, sU = 3, 4, 5, 6, 7
sX, sK, sV, sWQ, sWO, sW1, sW2, sC, sWM, sOUT, sWS = 16, 18, 20, 22, 24, 28, 30, 32, 34, 36, 40
SRD_A, SRD_B, SRD_WS, SRD_X = 44, 48, 52, 56
sM1, sM2, sM3 = 60, 62, 64
sPEND = 66
sANY = 90; sCNT = 92; sT0 = 8
sP1, sP2, sWOT, sB1, sD, sMI = 93, 94, 95, 96, 97, 98
sST = 100

def build(debug=False, kf=' nt', vf=' nt', wf=' nt'):
    a = Asm()
    a.raw(f"; @launch grid=(256,1,1) block=(512,1,1) lds={LDS_BYTES}")
    a.raw('.amdgcn_target "amdgcn-amd-amdhsa--gfx950"')
    a.raw(".text"); a.raw(f".globl {NAME}_kernel"); a.raw(".p2align 8"); a.raw(f".type {NAME}_kernel,@function")
    a.raw(f"{NAME}_kernel:")

    def srd(n, base, size, off=None):
        if off is None:
            a(f"s_mov_b32 s{n}, s{base}\n s_mov_b32 s{n+1}, s{base+1}")
        else:
            a(f"s_add_u32 s{n}, s{base}, s{off}\n s_addc_u32 s{n+1}, s{base+1}, 0")
        a(f"s_mov_b32 s{n+2}, {size}\n s_mov_b32 s{n+3}, 0x20000")

    vDBG = {'S': 7, 'C': 7}
    def stamp(idx):
        if not debug: return
        a(f"s_memrealtime s[{sST}:{sST+1}]\n s_waitcnt lgkmcnt(0)\n v_writelane_b32 v7, s{sST}, {idx}")
    def dump_stamps():
        if not debug: return
        a(f"""s_mov_b32 exec_hi, 0
        s_lshl_b32 s8, s2, 3
        s_add_u32 s8, s8, s{sWAVE}
        s_lshl_b32 s8, s8, 7
        s_add_u32 s8, s8, {WS_DBG}
        v_and_b32 v6, 63, v0
        v_lshlrev_b32 v6, 2, v6
        buffer_store_dword v7, v6, s[{SRD_WS}:{SRD_WS+3}], s8 offen
        s_waitcnt vmcnt(0)""")

    def rnd(dst, src):
        a(f"v_cvt_pk_bf16_f32 v{dst}, v{src}, v{src}\n v_lshlrev_b32 v{dst}, 16, v{dst}")

    def gather(loads, vtag, mask=None, sleep=1):
        n = len(loads); assert n <= 12
        full = '-1' if mask is None else hex(mask)
        for j in range(n): a(f"s_mov_b64 s[{sPEND+2*j}:{sPEND+2*j+1}], {full}")
        a(f"s_mov_b32 s{sCNT}, {SPIN_LIMIT}")
        lp = a.newlabel('L_g'); done = a.newlabel('L_gd')
        a.label(lp)
        for j, (ins, _) in enumerate(loads):
            sk = a.newlabel('L_gs')
            a(f"s_mov_b64 exec, s[{sPEND+2*j}:{sPEND+2*j+1}]\n s_cbranch_execz {sk}\n {ins}")
            a.label(sk)
        a(f"s_mov_b64 exec, {full}\n s_mov_b64 s[{sANY}:{sANY+1}], 0\n s_waitcnt vmcnt(0)")
        for j, (_, tags) in enumerate(loads):
            p = f"s[{sPEND+2*j}:{sPEND+2*j+1}]"
            a(f"v_cmp_ne_u32 {p}, v{vtag}, v{tags[0]}")
            for t in tags[1:]:
                a(f"v_cmp_ne_u32 vcc, v{vtag}, v{t}\n s_or_b64 {p}, {p}, vcc")
        for j in range(n):
            a(f"s_or_b64 s[{sANY}:{sANY+1}], s[{sANY}:{sANY+1}], s[{sPEND+2*j}:{sPEND+2*j+1}]")
        a(f"""s_cmp_eq_u64 s[{sANY}:{sANY+1}], 0
        s_cbranch_scc1 {done}
        s_sub_u32 s{sCNT}, s{sCNT}, 1
        s_cmp_eq_u32 s{sCNT}, 0
        s_cbranch_scc1 {done}
        s_sleep {sleep}
        s_branch {lp}""")
        a.label(done)
        a("s_mov_b64 exec, -1")

    DPPQ = "row_mask:0xf bank_mask:0xf"
    def red8(op, v, t):
        a(f"{op}_dpp v{v}, v{v}, v{v} quad_perm:[1,0,3,2] {DPPQ}")
        a(f"{op}_dpp v{v}, v{v}, v{v} quad_perm:[2,3,0,1] {DPPQ}")
        a(f"{op}_dpp v{v}, v{v}, v{v} row_half_mirror {DPPQ}")
    def red32(op, v, t):
        red8(op, v, t)
        a(f"{op}_dpp v{v}, v{v}, v{v} row_mirror {DPPQ}")
        a(f"v_mov_b32 v{t}, v{v}\n v_permlane16_swap_b32 v{v}, v{t}\n {op} v{v}, v{v}, v{t}")

    a(f"""s_cmp_ge_u32 s2, 256
    s_cbranch_scc1 L_end
    s_load_dwordx16 s[16:31], s[0:1], 0
    s_load_dwordx8 s[32:39], s[0:1], 64
    s_load_dwordx2 s[40:41], s[0:1], 96
    v_lshrrev_b32 v1, 6, v0
    v_readfirstlane_b32 s{sWAVE}, v1
    s_and_b32 s8, s2, 7
    s_lshl_b32 s8, s8, 2
    s_lshr_b32 s8, 0x57136420, s8
    s_and_b32 s8, s8, 7
    s_andn2_b32 s{sR}, s2, 7
    s_or_b32 s{sR}, s{sR}, s8
    s_lshr_b32 s{sPAIR}, s{sR}, 1
    s_and_b32 s{sHALF}, s{sR}, 1
    v_and_b32 v4, 63, v0""")
    if debug: a("v_mov_b32 v7, 0")
    a(f"s_cmp_ge_u32 s{sWAVE}, 4\n s_cbranch_scc1 L_ctrl")

    vKO, vVO, vTAG = 1, 2, 3
    RING = 64
    def tile(slot, i): return RING + 32 * slot + 4 * i
    a(f"""v_bfe_u32 v5, v4, 2, 2
    v_lshlrev_b32 v5, 8, v5
    v_lshrrev_b32 v6, 4, v4
    v_lshlrev_b32 v6, 6, v6
    v_and_b32 v{vKO}, 3, v4
    v_lshlrev_b32 v{vKO}, 4, v{vKO}
    v_add3_u32 v{vKO}, v{vKO}, v5, v6
    v_lshlrev_b32 v{vVO}, 4, v4
    s_lshl_b32 s8, s{sWAVE}, 12
    v_add_u32 v{vKO}, s8, v{vKO}
    v_add_u32 v{vVO}, s8, v{vVO}
    s_lshl_b32 s9, s{sR}, 19
    s_waitcnt lgkmcnt(0)""")
    srd(SRD_A, sK, 0x80000, 9)
    srd(SRD_B, sV, 0x80000, 9)
    vm = []
    def issue(g):
        slot = g % 6
        isK = g < 16
        gg = g if isK else g - 16
        for i in range(8):
            if i % 4 == 0: a(f"s_mov_b32 s10, {(2*gg + i//4) * 16384}")
            t = tile(slot, i)
            a(f"buffer_load_dwordx4 v[{t}:{t+3}], v{vKO if isK else vVO}, s[{SRD_A if isK else SRD_B}:{(SRD_A if isK else SRD_B)+3}], s10 offen offset:{(i%4)*1024}{kf if isK else vf}")
            vm.append(('g', g))
    def wait_for(key):
        last = max(i for i, k in enumerate(vm) if k == key)
        n = len(vm) - 1 - last
        assert n <= 63
        a(f"s_waitcnt vmcnt({n})")
    stamp(0)
    issue(0); issue(1)
    srd(SRD_WS, sWS, WS_SIZE)
    a("s_barrier")
    a(f"""s_mov_b32 s{sM1}, 0x22222222
    s_mov_b32 s{sM1+1}, 0x22222222
    s_mov_b32 s{sM2}, 0x44444444
    s_mov_b32 s{sM2+1}, 0x44444444
    s_mov_b32 s{sM3}, 0x88888888
    s_mov_b32 s{sM3+1}, 0x88888888""")
    for g in range(2, 6):
        wait_for(('g', g - 2)); issue(g)
    stamp(1)
    a("s_barrier")
    stamp(2)
    a(f"""v_bfe_u32 v5, v4, 3, 1
    v_lshlrev_b32 v5, 8, v5
    v_lshrrev_b32 v6, 4, v4
    v_lshlrev_b32 v6, 6, v6
    v_and_b32 v16, 3, v4
    v_lshlrev_b32 v16, 4, v16
    v_add3_u32 v5, v5, v6, v16
    v_mov_b32 v6, {L_TAG}
    ds_read_b128 v[16:19], v5 offset:0
    """.replace("offset:0", "") if False else f"""v_bfe_u32 v5, v4, 3, 1
    v_lshlrev_b32 v5, 8, v5
    v_lshrrev_b32 v6, 4, v4
    v_lshlrev_b32 v6, 6, v6
    v_and_b32 v16, 3, v4
    v_lshlrev_b32 v16, 4, v16
    v_add3_u32 v5, v5, v6, v16
    v_add_u32 v5, {L_QB}, v5
    v_mov_b32 v6, {L_TAG}
    ds_read_b128 v[16:19], v5
    ds_read_b32 v{vTAG}, v6
    v_and_b32 v20, 4, v4
    v_cmp_eq_u32 vcc, 0, v20
    s_waitcnt lgkmcnt(0)""")
    for i in range(4):
        a(f"v_cndmask_b32 v{8+i}, 0, v{16+i}, vcc")
    for i in range(4):
        a(f"v_cndmask_b32 v{12+i}, v{16+i}, 0, vcc" .replace(f"v{16+i}, 0, vcc", f"v{16+i}, v21, vcc") if False else f"v_sub_u32 v{12+i}, v{16+i}, v{8+i}")
    a(f"s_mov_b32 s11, {f2u(128 ** -0.5)}")
    def kproc(g, nxt):
        slot = g % 6
        wait_for(('g', g))
        for ac in range(4):
            t = tile(slot, 2 * ac)
            a(f"v_mfma_f32_16x16x32_bf16 v[{16+4*ac}:{19+4*ac}], v[8:11], v[{t}:{t+3}], 0")
        for ac in range(4):
            t = tile(slot, 2 * ac + 1)
            a(f"v_mfma_f32_16x16x32_bf16 v[{16+4*ac}:{19+4*ac}], v[12:15], v[{t}:{t+3}], v[{16+4*ac}:{19+4*ac}]")
        if nxt is not None: issue(nxt)
        for ac in range(4):
            a(f"v_mov_b32_dpp v{48+ac}, v{16+4*ac} quad_perm:[0,0,0,0] {DPPQ}")
        for c in range(1, 4):
            for ac in range(4):
                a(f"v_add_f32_dpp v{48+ac}, v{16+4*ac+c}, v{48+ac} quad_perm:[{c},{c},{c},{c}] {DPPQ}")
        a(f"""v_cndmask_b32 v48, v48, v49, s[{sM1}:{sM1+1}]
        v_cndmask_b32 v50, v50, v51, s[{sM3}:{sM3+1}]
        v_cndmask_b32 v48, v48, v50, s[14:15]""")
        rnd(48, 48)
        a(f"v_mul_f32 v48, s11, v48")
        rnd(32 + g, 48)
    a(f"s_mov_b32 s14, 0xcccccccc\n s_mov_b32 s15, 0xcccccccc")
    sched = {0: 6, 1: 7}
    for g in range(6, 15): sched[g] = g + 2
    for g in range(16):
        kproc(g, sched.get(g))
    stamp(3)
    a("v_max3_f32 v48, v32, v33, v34")
    for i in range(35, 47, 2): a(f"v_max3_f32 v48, v48, v{i}, v{i+1}")
    a("v_max_f32 v48, v48, v47")
    red32("v_max_f32", 48, 49)
    a(f"s_mov_b32 s12, {f2u(L2E)}")
    for i in range(16):
        a(f"v_sub_f32 v{16+i}, v{32+i}, v48")
    for i in range(16):
        a(f"v_mul_f32 v{16+i}, s12, v{16+i}")
    for i in range(16):
        a(f"v_exp_f32 v{16+i}, v{16+i}")
    for st in (8, 4, 2, 1):
        for i in range(st): a(f"v_add_f32 v{16+i}, v{16+i}, v{16+i+st}")
    a("v_mov_b32 v50, v16")
    red32("v_add_f32", 50, 49)
    a(f"""v_mov_b32 v49, v{vTAG}
    v_mov_b32 v51, v{vTAG}
    v_lshrrev_b32 v5, 5, v4
    v_lshlrev_b32 v5, 4, v5
    s_lshl_b32 s8, s{sR}, 7
    s_lshl_b32 s9, s{sWAVE}, 5
    s_add_u32 s8, s8, s9
    s_add_u32 s8, s8, {WS_ST}
    s_mov_b32 exec_lo, 1
 s_mov_b32 exec_hi, 1
    buffer_store_dwordx4 v[48:51], v5, s[{SRD_WS}:{SRD_WS+3}], s8 offen sc1
    s_mov_b64 exec, -1""")
    vm.append(('st', 0))
    a(f"""v_and_b32 v6, 7, v4
    v_lshlrev_b32 v6, 5, v6
    v_add_u32 v6, v6, v5
    s_lshl_b32 s13, s{sPAIR}, 8
    s_add_u32 s13, s13, {WS_ST}""")
    issue(17)
    wait_for(('g', 16)); issue(18)
    wait_for(('g', 17)); issue(19)
    wait_for(('g', 18))
    a(f"buffer_load_dwordx4 v[52:55], v6, s[{SRD_WS}:{SRD_WS+3}], s13 offen sc1"); vm.append(('poll', 1))
    issue(20)
    wait_for(('g', 19))
    a(f"buffer_load_dwordx4 v[56:59], v6, s[{SRD_WS}:{SRD_WS+3}], s13 offen sc1"); vm.append(('poll', 2))
    issue(21)
    wait_for(('poll', 1))
    a(f"""v_cmp_ne_u32 vcc, v{vTAG}, v53
    v_cmp_ne_u32 s[8:9], v{vTAG}, v55
    s_or_b64 vcc, vcc, s[8:9]
    s_cbranch_vccz L_stat_ok""")
    wait_for(('poll', 2))
    a(f"""v_mov_b32 v52, v56
    v_mov_b32 v53, v57
    v_mov_b32 v54, v58
    v_mov_b32 v55, v59
    v_cmp_ne_u32 vcc, v{vTAG}, v53
    v_cmp_ne_u32 s[8:9], v{vTAG}, v55
    s_or_b64 vcc, vcc, s[8:9]
    s_cbranch_vccz L_stat_ok""")
    gather([(f"buffer_load_dwordx4 v[52:55], v6, s[{SRD_WS}:{SRD_WS+3}], s13 offen sc1", [53, 55])], vTAG)
    a.label("L_stat_ok")
    a("s_nop 1")
    stamp(4)
    a("v_mov_b32 v48, v52")
    red8("v_max_f32", 48, 49)
    a(f"""v_sub_f32 v50, v52, v48
    v_mul_f32 v50, s12, v50
    v_exp_f32 v50, v50
    v_mul_f32 v50, v50, v54""")
    red8("v_add_f32", 50, 49)
    a("v_rcp_f32 v51, v50")
    a("v_fma_f32 v49, -v50, v51, 1.0\n v_fma_f32 v51, v49, v51, v51")
    for i in range(16): a(f"v_sub_f32 v{32+i}, v{32+i}, v48")
    for i in range(16): a(f"v_mul_f32 v{32+i}, s12, v{32+i}")
    for i in range(16): a(f"v_exp_f32 v{32+i}, v{32+i}")
    for i in range(16): a(f"v_mul_f32 v{32+i}, v{32+i}, v51")
    for i in range(16): a(f"v_cvt_pk_bf16_f32 v{32+i}, v{32+i}, v{32+i}")
    a(f"""v_lshrrev_b32 v5, 5, v4
    v_lshlrev_b32 v5, 6, v5
    v_bfe_u32 v6, v4, 2, 2
    v_lshlrev_b32 v6, 4, v6
    v_add_u32 v5, v5, v6
    v_and_b32 v6, 3, v4
    v_lshlrev_b32 v6, 2, v6
    v_add_u32 v5, v5, v6
    v_bfe_u32 v6, v4, 4, 1
    v_lshlrev_b32 v6, 1, v6
    v_add_u32 v5, v5, v6
    s_lshl_b32 s8, s{sWAVE}, 11
    s_add_u32 s8, s8, {L_PT}
    v_add_u32 v5, s8, v5""")
    for i in range(16): a(f"ds_write_b16 v5, v{32+i} offset:{i*128}")
    a(f"""v_and_b32 v6, 1, v4
    v_lshlrev_b32 v6, 6, v6
    v_lshrrev_b32 v5, 4, v4
    v_lshlrev_b32 v5, 4, v5
    v_add3_u32 v5, v5, v6, s8
    s_mov_b32 s8, 0x05040100
    s_mov_b32 s9, 0x07060302
    s_waitcnt lgkmcnt(0)
    ds_read_b128 v[8:11], v5""")
    def vproc(g, nxt):
        slot = g % 6; j = g - 16
        pa = 8 + 4 * (j % 2)
        wait_for(('g', g))
        def perms(w4):
            T = 16 + 8 * (w4 % 2)
            for u in range(4):
                a(f"v_perm_b32 v{T+u}, v{tile(slot,2*u+1)+w4}, v{tile(slot,2*u)+w4}, s8")
            for u in range(4):
                a(f"v_perm_b32 v{T+4+u}, v{tile(slot,2*u+1)+w4}, v{tile(slot,2*u)+w4}, s9")
        def mf(w4):
            T = 16 + 8 * (w4 % 2)
            for h in range(2):
                ac = 32 + 4 * (2 * w4 + h)
                c = "0" if j == 0 else f"v[{ac}:{ac+3}]"
                a(f"v_mfma_f32_16x16x32_bf16 v[{ac}:{ac+3}], v[{pa}:{pa+3}], v[{T+4*h}:{T+4*h+3}], {c}")
        perms(0); perms(1)
        a("s_waitcnt lgkmcnt(0)")
        if j + 1 < 16:
            pn = 8 + 4 * ((j + 1) % 2)
            a(f"ds_read_b128 v[{pn}:{pn+3}], v5 offset:{(j+1)*128}")
        mf(0); perms(2); mf(1); perms(3)
        if nxt is not None: issue(nxt)
        mf(2)
        if j == 0: wait_for(('poll', 2))
        mf(3)
    vs = {16: 22, 17: 23}
    for g in range(22, 30): vs[g] = g + 2
    for g in range(16, 32):
        vproc(g, vs.get(g))
    stamp(5)
    a(f"""v_lshlrev_b32 v5, 5, v4
    s_lshl_b32 s8, s{sWAVE}, 10
    s_add_u32 s8, s8, {L_OB}
    v_add_u32 v5, s8, v5
    s_mov_b64 exec, 0xffff""")
    for e in range(8):
        a(f"ds_write2_b32 v5, v{32+4*e}, v{33+4*e} offset0:{e} offset1:{128+e}")
    a("s_mov_b64 exec, -1\n s_waitcnt lgkmcnt(0)\n s_barrier")
    dump_stamps()
    a("s_endpgm")

    a.label("L_ctrl")
    vT = 3
    a(f"""s_setprio 3
    s_sub_u32 s{sWAVE}, s{sWAVE}, 4
    s_mov_b32 s{sP1}, -1
    s_mov_b32 s{sP2}, -1
    s_mov_b32 s{sWOT}, -1
    s_mov_b32 s{sB1}, -1
    s_mov_b32 s{sD}, -1
    s_mov_b32 s{sMI}, -1
    s_mov_b32 s{sU}, s{sPAIR}
    s_cmp_eq_u32 s{sHALF}, 0
    s_cbranch_scc1 L_role_u
    s_cmp_lt_u32 s{sPAIR}, 72
    s_cbranch_scc0 L_role_u1
    s_mov_b32 s{sMI}, s{sPAIR}
    s_branch L_role_done
    L_role_u1:
    s_add_u32 s{sU}, s{sPAIR}, 56
    L_role_u:
    s_cmp_lt_u32 s{sU}, 144
    s_cselect_b32 s{sWOT}, s{sU}, -1
    ; D tasks
    s_cmp_eq_u32 s{sWAVE}, 1
    s_cselect_b32 s{sD}, s{sU}, -1
    s_cmp_eq_u32 s{sWAVE}, 2
    s_cbranch_scc0 L_role_d
    s_add_u32 s8, s{sU}, 184
    s_cmp_lt_u32 s{sU}, 104
    s_cselect_b32 s{sD}, s8, -1
    L_role_d:
    s_cmp_lt_u32 s{sU}, 72
    s_cbranch_scc0 L_role_72
    s_cmp_eq_u32 s{sWAVE}, 0
    s_cselect_b32 s{sP2}, s{sU}, -1
    s_cselect_b32 s{sB1}, s{sU}, -1
    s_branch L_role_done
    L_role_72:
    s_cmp_lt_u32 s{sU}, 128
    s_cbranch_scc0 L_role_128
    s_lshl_b32 s8, s{sU}, 1
    s_sub_u32 s8, s8, 72
    s_add_u32 s8, s8, s{sWAVE}
    s_cmp_lt_u32 s{sWAVE}, 2
    s_cselect_b32 s{sP2}, s8, -1
    s_branch L_role_done
    L_role_128:
    s_cmp_lt_u32 s{sU}, 182
    s_cbranch_scc0 L_role_182
    s_sub_u32 s8, 181, s{sU}
    s_cmp_lt_u32 s{sWAVE}, 3
    s_cselect_b32 s{sP1}, s8, -1
    s_branch L_role_done
    L_role_182:
    s_sub_u32 s8, s{sU}, 182
    s_lshl_b32 s8, s8, 2
    s_add_u32 s8, s8, 184
    s_add_u32 s{sP2}, s8, s{sWAVE}
    L_role_done:
    s_waitcnt lgkmcnt(0)""")
    srd(SRD_WS, sWS, WS_SIZE)
    srd(SRD_X, sX, 8 * 1152)
    stamp(0)
    a(f"""v_mov_b32 v5, 0
    buffer_load_dword v{vT}, v5, s[{SRD_WS}:{SRD_WS+3}], 0 offen sc1
    v_mov_b32 v6, {L_CNT}
    ds_write_b32 v6, v5
    v_lshrrev_b32 v8, 3, v4
    v_and_b32 v9, 7, v4
    v_lshlrev_b32 v9, 4, v9""")
    a(f"""v_lshrrev_b32 v10, 4, v4
    v_lshlrev_b32 v10, 3, v10
    v_bfe_u32 v11, v4, 2, 2
    v_add_u32 v11, v10, v11
    v_lshlrev_b32 v10, 7, v11
    v_and_b32 v12, 3, v4
    v_lshlrev_b32 v12, 3, v12
    v_add_u32 v10, v10, v12""")

    def dma_rows(srd_n, pitch, nins, s_off, s_lds, pace=None):
        for i in range(nins):
            if pace is not None and i >= pace and i % 4 == 0: a(f"s_waitcnt vmcnt({pace})")
            a(f"s_mov_b32 m0, s{s_lds}\n s_add_u32 s{s_lds}, s{s_lds}, 1024")
            a(f"buffer_load_dwordx4 v13, s[{srd_n}:{srd_n+3}], s{s_off} offen{wf} lds")
            a(f"s_add_u32 s{s_off}, s{s_off}, {8*pitch}")

    def wo_dma():
        srd(SRD_B, sWO, 4096 * 1152)
        a(f"""s_mul_i32 s8, s{sWOT}, 57
        s_lshr_b32 s8, s8, 9
        s_mul_i32 s9, s8, 9
        s_sub_u32 s9, s{sWOT}, s9
        s_lshl_b32 s8, s8, 8
        s_lshl_b32 s10, s{sWAVE}, 6
        s_add_u32 s8, s8, s10
        s_mul_i32 s8, s8, 1152
        s_lshl_b32 s9, s9, 7
        s_add_u32 s8, s8, s9
        s_lshl_b32 s9, s{sWAVE}, 13
        s_add_u32 s9, s9, {L_WO}
        v_mul_u32_u24 v13, 1152, v8
        v_add_u32 v13, v13, v9""")
        dma_rows(SRD_B, 1152, 8, 8, 9)

    a(f"s_cmp_eq_u32 s{sP1}, -1\n s_cbranch_scc1 L_noP1a")
    srd(SRD_A, sC, 8 * 1152)
    srd(SRD_B, sWM, 576 * 6912)
    a(f"""v_and_b32 v14, 7, v4
    v_mul_u32_u24 v14, 1152, v14
    v_bfe_u32 v15, v4, 3, 1
    v_mul_u32_u24 v15, 192, v15
    v_add_u32 v14, v14, v15
    v_lshrrev_b32 v15, 4, v4
    v_lshlrev_b32 v15, 4, v15
    v_add_u32 v14, v14, v15
    s_mul_i32 s8, s{sWAVE}, 384""")
    for s_ in range(3):
        a(f"buffer_load_dwordx4 v[{16+4*s_}:{19+4*s_}], v14, s[{SRD_A}:{SRD_A+3}], s8 offen offset:{64*s_}")
    a(f"""v_mul_u32_u24 v13, 6912, v8
    v_add_u32 v13, v13, v9
    s_mul_i32 s8, s{sWAVE}, {192*6912}
    s_lshl_b32 s9, s{sP1}, 7
    s_add_u32 s8, s8, s9
    s_mul_i32 s9, s{sWAVE}, 24576""")
    dma_rows(SRD_B, 6912, 24, 8, 9)
    a.label("L_noP1a")
    a(f"s_cmp_eq_u32 s{sP2}, -1\n s_cbranch_scc1 L_noP2a")
    srd(SRD_B, sWQ, 576 * 8192)
    a(f"v_mul_u32_u24 v14, 1152, v8\n v_add_u32 v14, v14, v9")
    for i in range(9):
        a(f"buffer_load_dwordx4 v[{32+4*i}:{35+4*i}], v14, s[{SRD_X}:{SRD_X+3}], 0 offen offset:{128*i}")
    for i in range(6):
        for idn in range(64 * i, 64 * i + 64): assert (idn * 1366) >> 16 == idn // 48
        a(f"""v_add_u32 v14, {64*i}, v4
        v_mul_u32_u24 v{80+i}, 1366, v14
        v_lshrrev_b32 v{80+i}, 16, v{80+i}
        v_mul_u32_u24 v15, 48, v{80+i}
        v_sub_u32 v{86+i}, v14, v15""")
    a(f"s_lshr_b32 s12, s{sP2}, 6\n s_mul_i32 s8, s12, 384")
    for i in range(6):
        a(f"""v_mul_u32_u24 v14, 1152, v{80+i}
        v_lshlrev_b32 v15, 3, v{86+i}
        v_add_u32 v14, v14, v15
        buffer_load_dwordx2 v[{68+2*i}:{69+2*i}], v14, s[{SRD_X}:{SRD_X+3}], s8 offen""")
    a(f"""v_lshlrev_b32 v13, 13, v8
    v_add_u32 v13, v13, v9
    s_mul_i32 s8, s12, {192*8192}
    s_and_b32 s9, s{sP2}, 63
    s_lshl_b32 s9, s9, 7
    s_add_u32 s8, s8, s9
    s_mul_i32 s9, s{sWAVE}, 24576""")
    dma_rows(SRD_B, 8192, 24, 8, 9)
    a.label("L_noP2a")
    a("s_waitcnt lgkmcnt(0)\n s_barrier")
    a(f"s_cmp_eq_u32 s{sMI}, -1\n s_cbranch_scc1 L_noMa\n s_cmp_eq_u32 s{sWAVE}, 3\n s_cbranch_scc1 L_noMa")
    srd(SRD_A, sW1, 576 * 9216)
    srd(SRD_B, sW2, 4608 * 1152)
    a(f"""v_mul_u32_u24 v13, 9216, v8
    v_add_u32 v13, v13, v9
    s_mul_i32 s8, s{sWAVE}, {192*9216}
    s_lshl_b32 s9, s{sMI}, 7
    s_add_u32 s8, s8, s9
    s_mul_i32 s9, s{sWAVE}, 24576""")
    dma_rows(SRD_A, 9216, 24, 8, 9, pace=4)
    a(f"""v_lshlrev_b32 v13, 4, v4
    s_mul_i32 s8, s{sMI}, 73728
    s_mul_i32 s9, s{sWAVE}, 24576
    s_add_u32 s8, s8, s9
    s_add_u32 s9, s9, 73728""")
    dma_rows(SRD_B, 128, 24, 8, 9, pace=0) if False else None
    for i in range(24):
        if i % 4 == 0: a("s_waitcnt vmcnt(4)")
        a(f"s_mov_b32 m0, s9\n s_add_u32 s9, s9, 1024\n buffer_load_dwordx4 v13, s[{SRD_B}:{SRD_B+3}], s8 offen{wf} lds\n s_add_u32 s8, s8, 1024")
    a.label("L_noMa")
    a(f"s_cmp_eq_u32 s{sWOT}, -1\n s_cbranch_scc1 L_noWOa\n s_cmp_lg_u32 s{sP1}, -1\n s_cbranch_scc1 L_noWOa")
    wo_dma()
    a.label("L_noWOa")

    a(f"s_cmp_eq_u32 s{sP1}, -1\n s_cbranch_scc1 L_noP1b")
    a("s_waitcnt vmcnt(24)")
    a(f"""s_mov_b32 s8, {f2u(-L2E_HI)}
    s_mov_b32 s9, {f2u(-L2E_LO)}
    s_mov_b32 s10, {f2u(LN2)}
    s_mov_b32 s11, {f2u(127.5)}
    s_add_u32 s12, 0, 0""")
    a(f"v_add_u32 v{vT}, {TAG_INC}, v{vT}")
    for d in range(12):
        X = [32, 33]; TH = [34, 35]; TL = [36, 37]; E = [38, 39]; Y = [40, 41]
        a(f"v_lshlrev_b32 v32, 16, v{16+d}\n v_and_b32 v33, 0xffff0000, v{16+d}")
        for k in range(2): a(f"v_mul_f32 v{TH[k]}, s8, v{X[k]}")
        for k in range(2): a(f"v_fma_f32 v{TL[k]}, s8, v{X[k]}, -v{TH[k]}")
        for k in range(2): a(f"v_fma_f32 v{TL[k]}, s9, v{X[k]}, v{TL[k]}")
        for k in range(2): a(f"v_min_f32 v{TH[k]}, s11, v{TH[k]}")
        for k in range(2): a(f"v_exp_f32 v{E[k]}, v{TH[k]}")
        for k in range(2): a(f"v_mul_f32 v{TL[k]}, s10, v{TL[k]}")
        for k in range(2): a(f"v_fma_f32 v{E[k]}, v{E[k]}, v{TL[k]}, v{E[k]}")
        for k in range(2): a(f"v_add_f32 v{E[k]}, 1.0, v{E[k]}")
        for k in range(2): a(f"v_rcp_f32 v{TH[k]}, v{E[k]}")
        for k in range(2): a(f"v_mul_f32 v{Y[k]}, v{X[k]}, v{TH[k]}")
        for k in range(2): a(f"v_fma_f32 v{TL[k]}, -v{Y[k]}, v{E[k]}, v{X[k]}")
        for k in range(2): a(f"v_fma_f32 v{Y[k]}, v{TL[k]}, v{TH[k]}, v{Y[k]}")
        a(f"v_cvt_pk_bf16_f32 v{16+d}, v40, v41")
    a(f"s_mul_i32 s8, s{sWAVE}, 24576\n v_add_u32 v14, s8, v10\n s_waitcnt vmcnt(0)")
    stamp(1)
    for s_ in range(6):
        for jn in range(4):
            r = 64 + 16 * s_ + 4 * jn
            a(f"ds_read_b64_tr_b16 v[{r}:{r+1}], v14 offset:{s_*4096 + jn*32}")
            a(f"ds_read_b64_tr_b16 v[{r+2}:{r+3}], v14 offset:{s_*4096 + jn*32 + 512}")
        if s_ % 2 == 1: a("s_waitcnt lgkmcnt(0)") if s_ < 5 else None
    a("s_waitcnt lgkmcnt(0)")
    for s_ in range(6):
        hi = s_ // 3
        for jn in range(4):
            r = 64 + 16 * s_ + 4 * jn; ac = 32 + 16 * hi + 4 * jn
            c = "0" if s_ % 3 == 0 else f"v[{ac}:{ac+3}]"
            a(f"v_mfma_f32_16x16x32_bf16 v[{ac}:{ac+3}], v[{16+4*(s_%3)}:{19+4*(s_%3)}], v[{r}:{r+3}], {c}")
    a(f"""s_mov_b32 s8, 0
    s_mov_b32 s9, -1
    v_lshrrev_b32 v14, 5, v4
    s_lshl_b32 s10, s{sWAVE}, 1
    v_add_u32 v14, s10, v14
    v_lshlrev_b32 v14, 11, v14
    v_bfe_u32 v15, v4, 4, 1
    v_lshlrev_b32 v15, 10, v15
    v_add_u32 v14, v14, v15
    v_and_b32 v15, 15, v4
    v_lshlrev_b32 v15, 2, v15
    v_add_u32 v14, v14, v15
    v_add_u32 v14, {L_RB}, v14""")
    for i in range(16): a(f"v_cndmask_b32 v{32+i}, v{32+i}, v{48+i}, s[8:9]")
    for jn in range(4):
        for r in range(4):
            a(f"ds_write_b32 v14, v{32+4*jn+r} offset:{r*256 + jn*64}")
    a(f"""v_mov_b32 v15, 1
    v_mov_b32 v6, {L_CNT}
    s_waitcnt lgkmcnt(0)
    s_mov_b64 exec, 1
    ds_add_rtn_u32 v15, v6, v15
    s_waitcnt lgkmcnt(0)
    s_mov_b64 exec, -1
    v_readfirstlane_b32 s8, v15
    s_cmp_eq_u32 s8, 2
    s_cbranch_scc0 L_P1_notlast""")
    a(f"v_lshlrev_b32 v14, 8, v8\n v_add_u32 v14, v14, v9\n v_add_u32 v14, {L_RB}, v14")
    for p in range(6):
        a(f"ds_read_b128 v[{32+8*p}:{35+8*p}], v14 offset:{p*2048}\n ds_read_b128 v[{36+8*p}:{39+8*p}], v14 offset:{p*2048+128}")
    a("s_waitcnt lgkmcnt(0)")
    for p in range(1, 6):
        for i in range(8): a(f"v_add_f32 v{32+i}, v{32+i}, v{32+8*p+i}")
    a(f"""v_cvt_pk_bf16_f32 v80, v32, v33
    v_mov_b32 v81, v{vT}
    v_cvt_pk_bf16_f32 v82, v34, v35
    v_mov_b32 v83, v{vT}
    v_cvt_pk_bf16_f32 v84, v36, v37
    v_mov_b32 v85, v{vT}
    v_cvt_pk_bf16_f32 v86, v38, v39
    v_mov_b32 v87, v{vT}
    v_mul_u32_u24 v14, {MG_B}, v8
    v_add_u32 v14, v14, v9
    s_lshl_b32 s8, s{sP1}, 8
    s_add_u32 s8, s8, {WS_MG}
    buffer_store_dwordx4 v[80:83], v14, s[{SRD_WS}:{SRD_WS+3}], s8 offen sc1
    buffer_store_dwordx4 v[84:87], v14, s[{SRD_WS}:{SRD_WS+3}], s8 offen offset:128 sc1""")
    a.label("L_P1_notlast")
    stamp(2)
    a(f"s_cmp_eq_u32 s{sWOT}, -1\n s_cbranch_scc1 L_tag_done")
    wo_dma()
    a("s_branch L_tag_done")
    a.label("L_noP1b")
    a(f"s_cmp_eq_u32 s{sP2}, -1\n s_cbranch_scc1 L_tag_other")

    a(f"s_cmp_eq_u32 s{sWOT}, -1\n s_cbranch_scc1 L_P2_w0\n s_waitcnt vmcnt(32)\n s_branch L_P2_w1")
    a.label("L_P2_w0"); a("s_waitcnt vmcnt(24)"); a.label("L_P2_w1")
    a(f"v_add_u32 v{vT}, {TAG_INC}, v{vT}\n v_mov_b32 v16, 0\n v_mov_b32 v17, 0")
    for d in range(36):
        a(f"v_lshlrev_b32 v18, 16, v{32+d}\n v_and_b32 v19, 0xffff0000, v{32+d}\n v_add_f32 v16, v16, v18\n v_add_f32 v17, v17, v19")
    a("v_add_f32 v16, v16, v17")
    red8("v_add_f32", 16, 17)
    a(f"v_mul_f32 v16, {f2u(1.0/576)}, v16\n v_mov_b32 v20, 0\n v_mov_b32 v21, 0")
    for d in range(36):
        a(f"""v_lshlrev_b32 v18, 16, v{32+d}
        v_and_b32 v19, 0xffff0000, v{32+d}
        v_sub_f32 v18, v18, v16
        v_sub_f32 v19, v19, v16
        v_fmac_f32 v20, v18, v18
        v_fmac_f32 v21, v19, v19""")
    a("v_add_f32 v20, v20, v21")
    red8("v_add_f32", 20, 21)
    def ln_finish(vm_, vv):
        a(f"v_mul_f32 v{vv}, {f2u(1.0/576)}, v{vv}")
        rnd(vm_, vm_); rnd(vv, vv)
        a(f"v_add_f32 v{vv}, {f2u(1e-5)}, v{vv}")
        rnd(vv, vv)
        a(f"v_sqrt_f32 v{vv}, v{vv}")
        rnd(vv, vv)
        a(f"v_rcp_f32 v{vv}, v{vv}")
    ln_finish(16, 20)
    a(f"""v_mov_b32 v17, v20
    s_lshl_b32 s13, s{sWAVE}, 12
    s_add_u32 s13, s13, {L_HB}
    v_lshlrev_b32 v14, 3, v8
    v_add_u32 v14, s13, v14
    ds_write_b64 v14, v[16:17] offset:3328
    s_waitcnt lgkmcnt(0)""")
    for i in range(6):
        a(f"v_lshlrev_b32 v14, 3, v{80+i}\n v_add_u32 v14, s13, v14\n ds_read_b64 v[{20+2*i}:{21+2*i}], v14 offset:3328")
    a("s_waitcnt lgkmcnt(0)")
    for i in range(6):
        for k in range(2):
            d = 68 + 2 * i + k
            a(f"""v_lshlrev_b32 v18, 16, v{d}
            v_and_b32 v19, 0xffff0000, v{d}
            v_sub_f32 v18, v18, v{20+2*i}
            v_sub_f32 v19, v19, v{20+2*i}
            v_cvt_pk_bf16_f32 v{d}, v18, v19
            v_lshlrev_b32 v18, 16, v{d}
            v_and_b32 v19, 0xffff0000, v{d}
            v_mul_f32 v18, v18, v{21+2*i}
            v_mul_f32 v19, v19, v{21+2*i}
            v_cvt_pk_bf16_f32 v{d}, v18, v19""")
    for i in range(6):
        a(f"""v_mul_u32_u24 v{92+i}, {MG_B}, v{80+i}
        v_lshlrev_b32 v14, 4, v{86+i}
        v_add_u32 v{92+i}, v{92+i}, v14
        v_mul_u32_u24 v{98+i}, 400, v{80+i}
        v_lshlrev_b32 v14, 3, v{86+i}
        v_add3_u32 v{98+i}, v{98+i}, v14, s13""")
    a(f"s_cmp_eq_u32 s{sWOT}, -1\n s_cbranch_scc1 L_P2_w2\n s_waitcnt vmcnt(8)\n s_branch L_P2_w3")
    a.label("L_P2_w2"); a("s_waitcnt vmcnt(0)"); a.label("L_P2_w3")
    a(f"s_mul_i32 s8, s{sWAVE}, 24576\n v_add_u32 v14, s8, v10")
    for s_ in range(6):
        for jn in range(4):
            r = 160 + 16 * s_ + 4 * jn
            a(f"ds_read_b64_tr_b16 v[{r}:{r+1}], v14 offset:{s_*4096 + jn*32}")
            a(f"ds_read_b64_tr_b16 v[{r+2}:{r+3}], v14 offset:{s_*4096 + jn*32 + 512}")
        if s_ % 2 == 1: a("s_waitcnt lgkmcnt(0)")
    stamp(1)
    a(f"s_lshr_b32 s12, s{sP2}, 6\n s_mul_i32 s15, s12, 768\n s_add_u32 s15, s15, {WS_MG}")
    loads = []
    for i in range(6):
        loads.append((f"buffer_load_dwordx4 v[{104+8*i}:{107+8*i}], v{92+i}, s[{SRD_WS}:{SRD_WS+3}], s15 offen sc1", [105+8*i, 107+8*i]))
        loads.append((f"buffer_load_dwordx4 v[{108+8*i}:{111+8*i}], v{92+i}, s[{SRD_WS}:{SRD_WS+3}], s15 offen offset:2304 sc1", [109+8*i, 111+8*i]))
    gather(loads, vT, sleep=4)
    stamp(2)
    def hcalc(dst, ln, c1src, sasrc):
        a(f"""v_lshlrev_b32 v18, 16, v{c1src}
        v_and_b32 v19, 0xffff0000, v{c1src}
        v_add_f32 v18, 1.0, v18
        v_add_f32 v19, 1.0, v19
        v_cvt_pk_bf16_f32 v20, v18, v19
        v_lshlrev_b32 v18, 16, v20
        v_and_b32 v19, 0xffff0000, v20
        v_lshlrev_b32 v21, 16, v{ln}
        v_and_b32 v22, 0xffff0000, v{ln}
        v_mul_f32 v18, v18, v21
        v_mul_f32 v19, v19, v22
        v_cvt_pk_bf16_f32 v20, v18, v19
        v_lshlrev_b32 v18, 16, v20
        v_and_b32 v19, 0xffff0000, v20
        v_lshlrev_b32 v21, 16, v{sasrc}
        v_and_b32 v22, 0xffff0000, v{sasrc}
        v_add_f32 v18, v18, v21
        v_add_f32 v19, v19, v22
        v_cvt_pk_bf16_f32 v{dst}, v18, v19""")
    for i in range(6):
        for k in range(2):
            hcalc(68 + 2 * i + k, 68 + 2 * i + k, 108 + 8 * i + 2 * k, 104 + 8 * i + 2 * k)
        a(f"ds_write_b64 v{98+i}, v[{68+2*i}:{69+2*i}]")
    a(f"""v_and_b32 v14, 7, v4
    v_mul_u32_u24 v14, 400, v14
    v_lshrrev_b32 v15, 4, v4
    v_lshlrev_b32 v15, 4, v15
    v_add3_u32 v14, v14, v15, s13
    s_waitcnt lgkmcnt(0)""")
    for s_ in range(6): a(f"ds_read_b128 v[{32+4*s_}:{35+4*s_}], v14 offset:{64*s_}")
    a("s_waitcnt lgkmcnt(0)")
    for s_ in range(6):
        for jn in range(4):
            r = 160 + 16 * s_ + 4 * jn; ac = 64 + 4 * jn
            c = "0" if s_ == 0 else f"v[{ac}:{ac+3}]"
            a(f"v_mfma_f32_16x16x32_bf16 v[{ac}:{ac+3}], v[{32+4*s_}:{35+4*s_}], v[{r}:{r+3}], {c}")
    a(f"""v_bfe_u32 v14, v4, 4, 1
    v_lshlrev_b32 v14, 17, v14
    v_and_b32 v15, 15, v4
    v_lshlrev_b32 v15, 3, v15
    v_add_u32 v14, v14, v15
    s_lshl_b32 s8, s12, 18
    s_and_b32 s9, s{sP2}, 63
    s_lshl_b32 s9, s9, 9
    s_add_u32 s8, s8, s9
    s_add_u32 s8, s8, {WS_QP}""")
    for i in range(16): a(f"v_mov_b32 v{105+2*i}, v{vT}")
    for i in range(16): a(f"v_mov_b32 v{104+2*i}, v{64+i}")
    a("s_mov_b32 exec_hi, 0")
    for r in range(4):
        for jn in range(4):
            i = 4 * jn + r
            a(f"buffer_store_dwordx2 v[{104+2*i}:{105+2*i}], v14, s[{SRD_WS}:{SRD_WS+3}], s8 offen offset:{jn*128} sc1")
        a("s_add_u32 s8, s8, 32768")
    a("s_mov_b64 exec, -1")
    stamp(3)
    a("s_branch L_tag_done")
    a.label("L_tag_other")
    a(f"s_waitcnt vmcnt(0)\n v_add_u32 v{vT}, {TAG_INC}, v{vT}")
    a.label("L_tag_done")

    a(f"s_cmp_eq_u32 s{sWAVE}, 3\n s_cbranch_scc0 L_noQ")
    a(f"v_mov_b32 v14, {WS_MG}")
    gather([(f"buffer_load_dwordx2 v[16:17], v14, s[{SRD_WS}:{SRD_WS+3}], 0 offen sc1", [17])], vT, mask=1, sleep=8)
    stamp(4)
    a(f"""s_lshr_b32 s8, s{sPAIR}, 4
    s_lshl_b32 s8, s8, 15
    s_and_b32 s9, s{sPAIR}, 15
    s_lshl_b32 s9, s9, 11
    s_add_u32 s8, s8, s9
    s_add_u32 s13, s8, {WS_QP}
    s_add_u32 s14, s13, 0x40000
    s_add_u32 s15, s13, 0x80000
    v_lshlrev_b32 v14, 4, v4""")
    loads = []
    for kt in range(3):
        for hh in range(2):
            r = 16 + 8 * kt + 4 * hh
            loads.append((f"buffer_load_dwordx4 v[{r}:{r+3}], v14, s[{SRD_WS}:{SRD_WS+3}], s{13+kt} offen offset:{1024*hh} sc1", [r+1, r+3]))
    gather(loads, vT, sleep=2)
    for hh in range(2):
        for k in range(2):
            r = 16 + 4 * hh + 2 * k
            a(f"v_add_f32 v{r}, v{r}, v{r+8}\n v_add_f32 v{r}, v{r}, v{r+16}")
        a(f"v_cvt_pk_bf16_f32 v{16+4*hh}, v{16+4*hh}, v{18+4*hh}")
    a(f"""v_lshlrev_b32 v14, 2, v4
    v_add_u32 v14, {L_QB}, v14
    ds_write_b32 v14, v16
    ds_write_b32 v14, v20 offset:256
    v_mov_b32 v14, {L_TAG}
    ds_write_b32 v14, v{vT}
    s_waitcnt lgkmcnt(0)""")
    stamp(5)
    a.label("L_noQ")
    a("s_barrier")

    a("v_lshrrev_b32 v24, 5, v4\n v_and_b32 v25, 31, v4")
    a(f"s_cmp_eq_u32 s{sB1}, -1\n s_cbranch_scc1 L_noB1a")
    a(f"""s_mul_i32 s8, s{sB1}, 57
    s_lshr_b32 s8, s8, 9
    s_mul_i32 s9, s8, 9
    s_sub_u32 s9, s{sB1}, s9
    s_mul_i32 s10, s8, 1152
    s_lshl_b32 s11, s9, 7
    s_add_u32 s10, s10, s11
    v_lshlrev_b32 v14, 2, v25
    buffer_load_dword v28, v14, s[{SRD_X}:{SRD_X+3}], s10 offen
    s_mul_i32 s13, s8, {MG_B}
    s_lshl_b32 s11, s9, 8
    s_add_u32 s13, s13, s11
    s_add_u32 s13, s13, {WS_MG + 576*8}
    v_lshlrev_b32 v14, 3, v25""")
    gather([(f"buffer_load_dwordx2 v[26:27], v14, s[{SRD_WS}:{SRD_WS+3}], s13 offen sc1", [27])], vT, sleep=4)
    a.label("L_noB1a")
    a(f"s_cmp_eq_u32 s{sD}, -1\n s_cbranch_scc1 L_noDa")
    a(f"""s_lshr_b32 s8, s{sD}, 3
    s_lshl_b32 s8, s8, 4
    s_and_b32 s9, s{sD}, 3
    s_lshl_b32 s9, s9, 2
    s_add_u32 s8, s8, s9
    v_bfe_u32 v34, v4, 1, 2
    v_add_u32 v34, s8, v34
    s_bfe_u32 s9, s{sD}, 0x10002
    s_lshl_b32 s9, s9, 2
    v_and_b32 v35, 1, v4
    v_lshlrev_b32 v35, 1, v35
    v_add_u32 v35, s9, v35
    v_lshrrev_b32 v14, 1, v34
    v_lshlrev_b32 v14, 3, v14
    v_mul_u32_u24 v15, {MG_B}, v35
    v_add_u32 v15, v15, v14
    v_add_u32 v16, {MG_B}, v15
    s_mov_b32 s13, {WS_MG + 1440*8}""")
    gather([(f"buffer_load_dwordx2 v[30:31], v15, s[{SRD_WS}:{SRD_WS+3}], s13 offen sc1", [31]),
            (f"buffer_load_dwordx2 v[32:33], v16, s[{SRD_WS}:{SRD_WS+3}], s13 offen sc1", [33])], vT, sleep=4)
    a.label("L_noDa")
    a(f"s_cmp_eq_u32 s{sMI}, -1\n s_cbranch_scc1 L_noMb")
    a(f"""s_lshl_b32 s8, s{sWAVE}, 1
    v_add_u32 v14, s8, v24
    v_mul_u32_u24 v14, {MG_B}, v14
    v_lshlrev_b32 v15, 3, v25
    v_add_u32 v14, v14, v15
    s_mov_b32 s13, {WS_MG + 864*8}
    s_mov_b32 s14, {WS_MG + 1152*8}""")
    gather([(f"buffer_load_dwordx2 v[{40+2*i}:{41+2*i}], v14, s[{SRD_WS}:{SRD_WS+3}], s13 offen offset:{256*i} sc1", [41+2*i]) for i in range(9)], vT, sleep=4)
    gather([(f"buffer_load_dwordx2 v[{58+2*i}:{59+2*i}], v14, s[{SRD_WS}:{SRD_WS+3}], s14 offen offset:{256*i} sc1", [59+2*i]) for i in range(9)], vT, sleep=4)
    for i in range(9):
        a(f"""v_lshlrev_b32 v18, 16, v{58+2*i}
        v_and_b32 v19, 0xffff0000, v{58+2*i}
        v_add_f32 v18, 1.0, v18
        v_add_f32 v19, 1.0, v19
        v_cvt_pk_bf16_f32 v{41+2*i}, v18, v19""")
    a.label("L_noMb")
    a("s_waitcnt vmcnt(0)")
    a(f"s_cmp_eq_u32 s{sWOT}, -1\n s_cbranch_scc1 L_noWOb")
    a(f"s_lshl_b32 s8, s{sWAVE}, 13\n s_add_u32 s8, s8, {L_WO}\n v_add_u32 v14, s8, v10")
    for s_ in range(2):
        for jn in range(4):
            r = 64 + 16 * s_ + 4 * jn
            a(f"ds_read_b64_tr_b16 v[{r}:{r+1}], v14 offset:{s_*4096 + jn*32}")
            a(f"ds_read_b64_tr_b16 v[{r+2}:{r+3}], v14 offset:{s_*4096 + jn*32 + 512}")
    a("s_waitcnt lgkmcnt(0)")
    a.label("L_noWOb")
    a(f"""s_lshl_b32 s8, s{sWAVE}, 8
    s_add_u32 s8, s8, {L_OB}
    v_lshlrev_b32 v14, 2, v4
    v_add_u32 v14, s8, v14
    v_lshlrev_b32 v15, 3, v4
    s_lshl_b32 s8, s{sR}, 11
    s_lshl_b32 s9, s{sWAVE}, 9
    s_add_u32 s8, s8, s9
    s_add_u32 s8, s8, {WS_OP}
    v_mov_b32 v21, v{vT}""")
    stamp(6)
    a("s_barrier")
    stamp(7)
    a(f"""ds_read_b32 v16, v14
    ds_read_b32 v17, v14 offset:1024
    ds_read_b32 v18, v14 offset:2048
    ds_read_b32 v19, v14 offset:3072
    s_waitcnt lgkmcnt(0)
    v_add_f32 v16, v16, v17
    v_add_f32 v18, v18, v19
    v_add_f32 v20, v16, v18
    buffer_store_dwordx2 v[20:21], v15, s[{SRD_WS}:{SRD_WS+3}], s8 offen sc1""")

    a(f"s_cmp_eq_u32 s{sWOT}, -1\n s_cbranch_scc1 L_noWOc")
    a(f"""s_mul_i32 s12, s{sWOT}, 57
    s_lshr_b32 s12, s12, 9
    s_lshl_b32 s8, s12, 12
    s_lshl_b32 s9, s{sWAVE}, 9
    s_add_u32 s8, s8, s9
    s_add_u32 s8, s8, {WS_OP}
    v_lshlrev_b32 v14, 11, v24
    v_lshlrev_b32 v15, 4, v25
    v_add3_u32 v14, v14, v15, s8""")
    for b in range(8): a(f"v_add_u32 v{96+b}, {b*65536}, v14")
    gather([(f"buffer_load_dwordx4 v[{104+4*b}:{107+4*b}], v{96+b}, s[{SRD_WS}:{SRD_WS+3}], 0 offen sc1", [105+4*b, 107+4*b]) for b in range(8)], vT)
    stamp(8)
    a(f"""s_mul_i32 s8, s{sWAVE}, 1152
    s_add_u32 s8, s8, {L_AB}
    v_mul_u32_u24 v14, 144, v24
    v_lshlrev_b32 v15, 2, v25
    v_add3_u32 v14, v14, v15, s8""")
    for bp in range(4):
        r0 = 104 + 8 * bp; r1 = r0 + 4
        a(f"v_permlane32_swap_b32 v{r0}, v{r1}\n v_permlane32_swap_b32 v{r0+2}, v{r1+2}")
    for bp in range(4):
        r0 = 104 + 8 * bp; r1 = r0 + 4
        a(f"v_add_f32 v{r0}, v{r0}, v{r1}\n v_add_f32 v{r0+2}, v{r0+2}, v{r1+2}\n v_cvt_pk_bf16_f32 v{r0}, v{r0}, v{r0+2}")
        a(f"ds_write_b32 v14, v{r0} offset:{288*bp}")
    a(f"""v_and_b32 v14, 7, v4
    v_mul_u32_u24 v14, 144, v14
    v_lshrrev_b32 v15, 4, v4
    v_lshlrev_b32 v15, 4, v15
    v_add3_u32 v14, v14, v15, s8
    s_waitcnt lgkmcnt(0)
    ds_read_b128 v[104:107], v14
    ds_read_b128 v[108:111], v14 offset:64
    v_bfe_u32 v14, v4, 4, 1
    v_lshlrev_b32 v14, 10, v14
    v_and_b32 v15, 15, v4
    v_lshlrev_b32 v15, 2, v15
    s_lshl_b32 s8, s{sWAVE}, 11
    s_add_u32 s8, s8, {L_RB2}
    v_add3_u32 v14, v14, v15, s8
    s_waitcnt lgkmcnt(0)""")
    for s_ in range(2):
        for jn in range(4):
            r = 64 + 16 * s_ + 4 * jn; ac = 112 + 4 * jn
            c = "0" if s_ == 0 else f"v[{ac}:{ac+3}]"
            a(f"v_mfma_f32_16x16x32_bf16 v[{ac}:{ac+3}], v[{104+4*s_}:{107+4*s_}], v[{r}:{r+3}], {c}")
    a("s_mov_b32 exec_hi, 0")
    for jn in range(4):
        for rp in range(2):
            a(f"ds_write2_b32 v14, v{112+4*jn+2*rp}, v{113+4*jn+2*rp} offset0:{128*rp + 16*jn} offset1:{128*rp + 64 + 16*jn}")
    a(f"""s_mov_b64 exec, -1
    s_lshl_b32 s8, s{sWAVE}, 9
    s_add_u32 s8, s8, {L_RB2}
    v_lshlrev_b32 v14, 8, v24
    v_lshlrev_b32 v15, 3, v25
    v_add3_u32 v14, v14, v15, s8
    s_lshl_b32 s8, s{sWOT}, 12
    s_lshl_b32 s9, s{sWAVE}, 10
    s_add_u32 s8, s8, s9
    s_add_u32 s8, s8, {WS_YP}
    v_lshlrev_b32 v15, 4, v4
    v_mov_b32 v113, v{vT}
    s_waitcnt lgkmcnt(0)
    s_barrier
    ds_read_b64 v[104:105], v14
    ds_read_b64 v[106:107], v14 offset:2048
    ds_read_b64 v[108:109], v14 offset:4096
    ds_read_b64 v[110:111], v14 offset:6144
    v_mov_b32 v115, v{vT}
    s_waitcnt lgkmcnt(0)
    v_add_f32 v104, v104, v106
    v_add_f32 v108, v108, v110
    v_add_f32 v105, v105, v107
    v_add_f32 v109, v109, v111
    v_add_f32 v112, v104, v108
    v_add_f32 v114, v105, v109
    buffer_store_dwordx4 v[112:115], v15, s[{SRD_WS}:{SRD_WS+3}], s8 offen sc1""")
    stamp(9)
    a.label("L_noWOc")

    a(f"s_cmp_eq_u32 s{sB1}, -1\n s_cbranch_scc1 L_noB1b")
    a(f"""s_mul_i32 s12, s{sB1}, 57
    s_lshr_b32 s12, s12, 9
    s_mul_i32 s9, s12, 9
    s_sub_u32 s11, s{sB1}, s9
    s_lshl_b32 s8, s11, 12
    s_lshl_b32 s9, s12, 9
    s_add_u32 s8, s8, s9
    s_add_u32 s8, s8, {WS_YP}
    v_mul_u32_u24 v14, 36864, v24
    v_lshlrev_b32 v15, 4, v25
    v_add3_u32 v14, v14, v15, s8""")
    for i in range(8): a(f"v_add_u32 v{96+i}, {i*73728}, v14")
    gather([(f"buffer_load_dwordx4 v[{104+4*i}:{107+4*i}], v{96+i}, s[{SRD_WS}:{SRD_WS+3}], 0 offen sc1", [105+4*i, 107+4*i]) for i in range(8)], vT)
    stamp(10)
    for st in (4, 2, 1):
        for i in range(st):
            a(f"v_add_f32 v{104+4*i}, v{104+4*i}, v{104+4*(i+st)}\n v_add_f32 v{106+4*i}, v{106+4*i}, v{106+4*(i+st)}")
    a(f"""v_mov_b32 v105, v104
    v_mov_b32 v107, v106
    v_permlane32_swap_b32 v104, v105
    v_permlane32_swap_b32 v106, v107
    v_add_f32 v104, v104, v105
    v_add_f32 v106, v106, v107
    v_cvt_pk_bf16_f32 v104, v104, v106
    v_lshlrev_b32 v18, 16, v104
    v_and_b32 v19, 0xffff0000, v104
    v_lshlrev_b32 v20, 16, v26
    v_and_b32 v21, 0xffff0000, v26
    v_mul_f32 v18, v18, v20
    v_mul_f32 v19, v19, v21
    v_cvt_pk_bf16_f32 v104, v18, v19
    v_lshlrev_b32 v18, 16, v104
    v_and_b32 v19, 0xffff0000, v104
    v_lshlrev_b32 v20, 16, v28
    v_and_b32 v21, 0xffff0000, v28
    v_add_f32 v18, v18, v20
    v_add_f32 v19, v19, v21
    v_cvt_pk_bf16_f32 v104, v18, v19
    v_mov_b32 v105, v{vT}
    s_mul_i32 s8, s12, 2304
    s_lshl_b32 s9, s11, 8
    s_add_u32 s8, s8, s9
    s_add_u32 s8, s8, {WS_X1}
    v_lshlrev_b32 v14, 3, v25
    s_mov_b32 exec_hi, 0
    buffer_store_dwordx2 v[104:105], v14, s[{SRD_WS}:{SRD_WS+3}], s8 offen sc1
    s_mov_b64 exec, -1""")
    stamp(11)
    a.label("L_noB1b")

    a(f"s_cmp_eq_u32 s{sMI}, -1\n s_cbranch_scc1 L_noMc")
    a(f"s_lshl_b32 s8, s{sWAVE}, 5\n v_add_u32 v14, s8, v10\n v_add_u32 v15, 0x9000, v14")
    for s_ in range(18):
        r = 112 + 4 * s_
        base = 14 if s_ < 9 else 15; so = (s_ % 9) * 4096
        a(f"ds_read_b64_tr_b16 v[{r}:{r+1}], v{base} offset:{so}\n ds_read_b64_tr_b16 v[{r+2}:{r+3}], v{base} offset:{so+512}")
        if s_ % 4 == 3: a("s_waitcnt lgkmcnt(0)")
    a(f"""v_mul_u32_u24 v14, 1152, v11
    v_add_u32 v14, v14, v12
    s_mul_i32 s8, s{sWAVE}, 288
    s_add_u32 s8, s8, 73728
    v_add_u32 v14, s8, v14
    s_waitcnt lgkmcnt(0)""")
    for t in range(9):
        for s_ in range(2):
            r = 184 + 8 * t + 4 * s_
            so = s_ * 32 * 1152 + t * 32
            a(f"ds_read_b64_tr_b16 v[{r}:{r+1}], v14 offset:{so}\n ds_read_b64_tr_b16 v[{r+2}:{r+3}], v14 offset:{so + 4*1152}")
        if t % 2 == 1: a("s_waitcnt lgkmcnt(0)")
    a(f"""s_lshl_b32 s8, s{sWAVE}, 1
    v_add_u32 v29, s8, v24
    v_mul_u32_u24 v14, 2304, v29
    v_lshlrev_b32 v15, 3, v25
    v_add_u32 v14, v14, v15
    v_mul_u32_u24 v29, 1168, v29
    v_lshlrev_b32 v15, 2, v25
    v_add_u32 v29, v29, v15
    v_add_u32 v29, {L_H2}, v29
    s_mov_b32 s13, {WS_X1}
    s_waitcnt lgkmcnt(0)
    s_barrier""")
    stamp(8)
    gather([(f"buffer_load_dwordx2 v[{58+2*i}:{59+2*i}], v14, s[{SRD_WS}:{SRD_WS+3}], s13 offen offset:{256*i} sc1", [59+2*i]) for i in range(9)], vT)
    stamp(9)
    for i in range(9):
        a(f"v_lshlrev_b32 v{76+2*i}, 16, v{58+2*i}\n v_and_b32 v{77+2*i}, 0xffff0000, v{58+2*i}")
    a("v_add_f32 v16, v76, v77\n v_add_f32 v17, v78, v79")
    for i in range(2, 9): a(f"v_add_f32 v16, v16, v{76+2*i}\n v_add_f32 v17, v17, v{77+2*i}")
    a("v_add_f32 v16, v16, v17")
    red32("v_add_f32", 16, 17)
    a(f"v_mul_f32 v16, {f2u(1.0/576)}, v16\n v_mov_b32 v20, 0\n v_mov_b32 v21, 0")
    for i in range(9):
        a(f"v_sub_f32 v18, v{76+2*i}, v16\n v_sub_f32 v19, v{77+2*i}, v16\n v_fmac_f32 v20, v18, v18\n v_fmac_f32 v21, v19, v19")
    a("v_add_f32 v20, v20, v21")
    red32("v_add_f32", 20, 21)
    ln_finish(16, 20)
    for i in range(9):
        a(f"""v_sub_f32 v18, v{76+2*i}, v16
        v_sub_f32 v19, v{77+2*i}, v16
        v_cvt_pk_bf16_f32 v22, v18, v19
        v_lshlrev_b32 v18, 16, v22
        v_and_b32 v19, 0xffff0000, v22
        v_mul_f32 v18, v18, v20
        v_mul_f32 v19, v19, v20
        v_cvt_pk_bf16_f32 v22, v18, v19
        v_lshlrev_b32 v18, 16, v22
        v_and_b32 v19, 0xffff0000, v22
        v_lshlrev_b32 v23, 16, v{41+2*i}
        v_and_b32 v26, 0xffff0000, v{41+2*i}
        v_mul_f32 v18, v18, v23
        v_mul_f32 v19, v19, v26
        v_cvt_pk_bf16_f32 v22, v18, v19
        v_lshlrev_b32 v18, 16, v22
        v_and_b32 v19, 0xffff0000, v22
        v_lshlrev_b32 v23, 16, v{40+2*i}
        v_and_b32 v26, 0xffff0000, v{40+2*i}
        v_add_f32 v18, v18, v23
        v_add_f32 v19, v19, v26
        v_cvt_pk_bf16_f32 v{58+i}, v18, v19
        ds_write_b32 v29, v{58+i} offset:{128*i}""")
    a(f"""v_and_b32 v14, 7, v4
    v_mul_u32_u24 v15, 1168, v14
    v_lshrrev_b32 v16, 4, v4
    v_lshlrev_b32 v16, 4, v16
    v_add_u32 v15, v15, v16
    v_add_u32 v15, {L_H2}, v15
    v_mul_u32_u24 v14, 144, v14
    v_add_u32 v14, v14, v16
    v_add_u32 v14, {L_H1}, v14
    s_waitcnt lgkmcnt(0)
    s_barrier""")
    for s_ in range(18): a(f"ds_read_b128 v[{36+4*s_}:{39+4*s_}], v15 offset:{64*s_}")
    a(f"""v_bfe_u32 v16, v4, 4, 1
    v_mul_u32_u24 v16, 576, v16
    v_and_b32 v17, 15, v4
    v_lshlrev_b32 v17, 1, v17
    s_lshl_b32 s8, s{sWAVE}, 5
    s_add_u32 s8, s8, {L_H1}
    v_add3_u32 v16, v16, v17, s8""")
    for s_ in range(18):
        a(f"s_waitcnt lgkmcnt({min(15, 17 - s_)})")
        ac = 28 + 4 * (s_ % 2)
        c = "0" if s_ < 2 else f"v[{ac}:{ac+3}]"
        a(f"v_mfma_f32_16x16x32_bf16 v[{ac}:{ac+3}], v[{36+4*s_}:{39+4*s_}], v[{112+4*s_}:{115+4*s_}], {c}")
    for r in range(4): a(f"v_add_f32 v{28+r}, v{28+r}, v{32+r}")
    for r in range(4): a(f"v_max_f32 v{28+r}, 0, v{28+r}")
    for r in range(4): a(f"v_cvt_pk_bf16_f32 v{28+r}, v{28+r}, v{28+r}")
    a("s_mov_b32 exec_hi, 0")
    for r in range(4): a(f"ds_write_b16 v16, v{28+r} offset:{144*r}")
    a(f"""s_mov_b64 exec, -1
    s_waitcnt lgkmcnt(0)
    s_barrier
    ds_read_b128 v[36:39], v14
    ds_read_b128 v[40:43], v14 offset:64
    v_bfe_u32 v15, v4, 4, 1
    v_lshlrev_b32 v15, 9, v15
    v_and_b32 v16, 15, v4
    v_lshlrev_b32 v16, 5, v16
    v_lshlrev_b32 v17, 4, v24
    v_add3_u32 v15, v15, v16, v17
    s_mul_i32 s8, s{sMI}, 36864
    s_mul_i32 s9, s{sWAVE}, 9216
    s_add_u32 s8, s8, s9
    s_add_u32 s8, s8, {WS_ZP}
    s_mov_b32 s10, 0
    s_mov_b32 s11, -1""")
    for t in range(9): a(f"v_mov_b32 v{113+4*t}, v{vT}\n v_mov_b32 v{115+4*t}, v{vT}")
    a("s_waitcnt lgkmcnt(0)")
    for s_ in range(2):
        for t in range(9):
            ac = 44 + 4 * t; r = 184 + 8 * t + 4 * s_
            c = "0" if s_ == 0 else f"v[{ac}:{ac+3}]"
            a(f"v_mfma_f32_16x16x32_bf16 v[{ac}:{ac+3}], v[{36+4*s_}:{39+4*s_}], v[{r}:{r+3}], {c}")
    for t in range(9):
        ac = 44 + 4 * t
        a(f"v_cndmask_b32 v{112+4*t}, v{ac}, v{ac+2}, s[10:11]\n v_cndmask_b32 v{114+4*t}, v{ac+1}, v{ac+3}, s[10:11]")
        if t % 4 == 0 and t: a("s_add_u32 s8, s8, 4096")
        a(f"buffer_store_dwordx4 v[{112+4*t}:{115+4*t}], v15, s[{SRD_WS}:{SRD_WS+3}], s8 offen offset:{(t%4)*1024} sc1")
    stamp(10)
    a.label("L_noMc")

    a(f"s_cmp_eq_u32 s{sD}, -1\n s_cbranch_scc1 L_noDb")
    a(f"""v_lshrrev_b32 v14, 1, v34
    v_lshlrev_b32 v14, 3, v14
    v_mul_u32_u24 v15, 2304, v35
    v_add_u32 v15, v15, v14
    s_mov_b32 s13, {WS_X1}""")
    gather([(f"buffer_load_dwordx2 v[36:37], v15, s[{SRD_WS}:{SRD_WS+3}], s13 offen sc1", [37]),
            (f"buffer_load_dwordx2 v[38:39], v15, s[{SRD_WS}:{SRD_WS+3}], s13 offen offset:2304 sc1", [39])], vT, mask=0xff, sleep=2)
    stamp(12)
    a(f"""s_lshl_b32 s8, s{sD}, 7
    s_add_u32 s8, s8, {WS_ZP}
    v_mul_u32_u24 v14, 36864, v8
    v_add3_u32 v14, v14, v9, s8""")
    for i in range(9): a(f"v_add_u32 v{96+i}, {i*8*36864}, v14")
    a("v_and_b32 v14, 1, v34\n v_cmp_eq_u32 vcc, 0, v14")
    for r in (36, 38, 30, 32):
        a(f"v_lshlrev_b32 v16, 16, v{r}\n v_and_b32 v17, 0xffff0000, v{r}\n v_cndmask_b32 v{r}, v17, v16, vcc")
    srd(SRD_A, sOUT, 4608 * 2)
    a(f"""v_mul_u32_u24 v15, 1152, v35
    v_lshlrev_b32 v14, 1, v34
    v_add_u32 v15, v15, v14""")
    gather([(f"buffer_load_dwordx4 v[{108+4*i}:{111+4*i}], v{96+i}, s[{SRD_WS}:{SRD_WS+3}], 0 offen sc1", [109+4*i, 111+4*i]) for i in range(9)], vT, sleep=2)
    stamp(13)
    a("v_add_f32 v108, v108, v140\n v_add_f32 v110, v110, v142")
    for st in (4, 2, 1):
        for i in range(st):
            a(f"v_add_f32 v{108+4*i}, v{108+4*i}, v{108+4*(i+st)}\n v_add_f32 v{110+4*i}, v{110+4*i}, v{110+4*(i+st)}")
    for r in (108, 110): a(f"v_add_f32_dpp v{r}, v{r}, v{r} row_ror:8 {DPPQ}")
    for sw in ("v_permlane16_swap_b32", "v_permlane32_swap_b32"):
        a(f"v_mov_b32 v109, v108\n v_mov_b32 v111, v110\n {sw} v108, v109\n {sw} v110, v111\n v_add_f32 v108, v108, v109\n v_add_f32 v110, v110, v111")
    for (y, gb, x1) in ((108, 30, 36), (110, 32, 38)):
        rnd(y, y)
        a(f"v_mul_f32 v{y}, v{y}, v{gb}")
        rnd(y, y)
        a(f"v_add_f32 v{y}, v{y}, v{x1}\n v_cvt_pk_bf16_f32 v{y}, v{y}, v{y}")
    a(f"""s_mov_b64 exec, 0xff
    buffer_store_short v108, v15, s[{SRD_A}:{SRD_A+3}], 0 offen
    buffer_store_short v110, v15, s[{SRD_A}:{SRD_A+3}], 0 offen offset:1152
    s_mov_b64 exec, -1
    s_cmp_eq_u32 s{sD}, 0
    s_cbranch_scc0 L_noDb
    v_mov_b32 v14, 0
    s_mov_b64 exec, 1
    buffer_store_dword v{vT}, v14, s[{SRD_WS}:{SRD_WS+3}], 0 offen sc1
    s_mov_b64 exec, -1""")
    a.label("L_noDb")
    stamp(14)
    if debug: a(f"s_add_u32 s{sWAVE}, s{sWAVE}, 4")
    dump_stamps()
    a.label("L_end")
    a("s_endpgm")
    a.raw('.section .rodata,"a"'); a.raw(".p2align 6"); a.raw(f".amdhsa_kernel {NAME}_kernel")
    for l in (".amdhsa_next_free_vgpr 256", ".amdhsa_next_free_sgpr 102", ".amdhsa_accum_offset 256",
              ".amdhsa_group_segment_fixed_size 0", ".amdhsa_kernarg_size 104", ".amdhsa_user_sgpr_count 2",
              ".amdhsa_user_sgpr_kernarg_segment_ptr 1", ".amdhsa_system_sgpr_workgroup_id_x 1"):
        a.raw("  " + l)
    a.raw(".end_amdhsa_kernel")
    return a.text()

if __name__ == "__main__":
    out = sys.argv[1] if len(sys.argv) > 1 else f"cdna_kernels/{NAME}.s"
    dbg = len(sys.argv) > 2 and sys.argv[2] == "debug"
    kw = dict(x.split('=') for x in sys.argv[3:])
    kw = {k: (' ' + v.replace('+', ' ') if v else '') if k in ('kf', 'vf', 'wf') else int(v) for k, v in kw.items()}
    open(out, "w").write(build(dbg, **kw))
    for u in range(144): assert (u * 57) >> 9 == u // 9
```

```python
import sys, struct
sys.path.insert(0, 'gen')
from asmlib import Asm

NAME = "adaLN_cond__gqa_block_cached__dense_activation_relu__decode"
def f2u(x): return struct.unpack('<I', struct.pack('<f', x))[0]

WS_EPOCH = 0x0
WS_MG = 0x1000
MG_B = 1728 * 8
WS_QP = 0x20000
WS_ST = 0xE0000
WS_CL = 0xF0000
WS_OP = 0x100000
WS_YP = 0x180000
WS_X1 = 0x220000
WS_ZP = 0x240000
ZP_S = 18432
WS_SX = 0x400000
WS_DBG = 0x800000
WS_SIZE = 0x1000000
L_WO = 73728
L_RB = 106496
L_HB = 118784
L_AB = 135168
L_RB2 = 139776
L_PT = 147456
PT_W = 3072
OB_OFF = 1024
L_QB = 159744
L_TAG = L_QB + 512
L_CNT = L_QB + 576
L_ZERO = L_QB + 640
L_H2 = L_PT
L_H1 = L_PT + 9344 + 16
assert L_RB2 + 8192 <= L_PT + OB_OFF and L_PT + 4 * PT_W <= L_QB and L_H1 + 1152 <= L_QB
LDS_BYTES = 163840
TAG_INC = 0x9E3779B9
SPIN_LIMIT = 300000
L2E = 1.4426950408889634
L2E_HI = struct.unpack('<f', struct.pack('<f', L2E))[0]
L2E_LO = L2E - L2E_HI
LN2 = 0.6931471805599453

sWAVE, sR, sPAIR, sHALF, sU = 3, 4, 5, 6, 7
sX, sK, sV, sWQ, sWO, sW1, sW2, sC, sWM, sOUT, sWS = 16, 18, 20, 22, 24, 28, 30, 32, 34, 36, 40
sFULL = 42
SRD_A, SRD_B, SRD_WS, SRD_X = 44, 48, 52, 56
sM1, sM3, sM23 = 60, 62, 64
sPEND = 66
sANY = 90; sCNT = 92
sP1, sP2, sWOT, sB1, sD, sMI, sURG = 93, 94, 95, 96, 97, 98, 99
sST = 100
sOPA, sYPA, sX1A, sZPA = 26, 27, 38, 39

def build(debug=False, kf=' nt', vf=' nt', wf=' nt', depth=5, cdepth=8, edepth=8, eN=0, first=4, p2dry=1, mpace=4, mpace2=1, uneven=1, dry=1, dsleep=20, w1early=0, p2sleep=0):
    a = Asm()
    a.raw(f"; @launch grid=(256,1,1) block=(512,1,1) lds={LDS_BYTES}")
    a.raw('.amdgcn_target "amdgcn-amd-amdhsa--gfx950"')
    a.raw(".text"); a.raw(f".globl {NAME}_kernel"); a.raw(".p2align 8"); a.raw(f".type {NAME}_kernel,@function")
    a.raw(f"{NAME}_kernel:")
    WS = f"s[{SRD_WS}:{SRD_WS+3}]"
    FULL = f"s[{sFULL}:{sFULL+1}]"

    def srd(n, base, size, off=None):
        if off is None:
            a(f"s_mov_b32 s{n}, s{base}\n s_mov_b32 s{n+1}, s{base+1}")
        else:
            a(f"s_add_u32 s{n}, s{base}, s{off}\n s_addc_u32 s{n+1}, s{base+1}, 0")
        a(f"s_mov_b32 s{n+2}, {size}\n s_mov_b32 s{n+3}, 0x20000")

    def stamp(idx):
        if not debug: return
        a(f"s_memrealtime s[{sST}:{sST+1}]\n s_waitcnt lgkmcnt(0)\n v_writelane_b32 v7, s{sST}, {idx}")
    def dump_stamps():
        if not debug: return
        a(f"""s_mov_b32 exec_hi, 0
        s_lshl_b32 s8, s2, 3
        s_add_u32 s8, s8, s{sWAVE}
        s_lshl_b32 s8, s8, 7
        s_add_u32 s8, s8, {WS_DBG}
        v_and_b32 v6, 63, v0
        v_lshlrev_b32 v6, 2, v6
        buffer_store_dword v7, v6, {WS}, s8 offen
        s_waitcnt vmcnt(0)""")

    def rnd(dst, src):
        a(f"v_cvt_pk_bf16_f32 v{dst}, v{src}, v{src}\n v_lshlrev_b32 v{dst}, 16, v{dst}")
    def unpack(lo, src):
        a(f"v_lshlrev_b32 v{lo}, 16, v{src}\n v_and_b32 v{lo+1}, 0xffff0000, v{src}")
    def guarded(ins):
        sk = a.newlabel('L_k')
        a(f"s_cbranch_execz {sk}\n {ins}"); a.label(sk)
    def barrier_tail():
        guarded("s_barrier")

    def gather(loads, vtag, mask=None, sleep=1, check=None, fast=None):
        n = len(loads); assert n <= 12
        if mask is None:
            base = FULL
        else:
            a(f"s_and_b32 s{sANY}, s{sFULL}, {hex(mask)}\n s_mov_b32 s{sANY+1}, 0")
            base = f"s[{sANY}:{sANY+1}]"
        for j in range(n):
            m = loads[j][2] if len(loads[j]) > 2 else None
            if m == 'lo': a(f"s_mov_b32 s{sPEND+2*j}, s{sFULL}\n s_mov_b32 s{sPEND+2*j+1}, 0")
            else: a(f"s_mov_b64 s[{sPEND+2*j}:{sPEND+2*j+1}], {base}")
        a(f"s_mov_b32 s{sCNT}, {SPIN_LIMIT}")
        lp = a.newlabel('L_g'); done = a.newlabel('L_gd')
        a.label(lp)
        for j, ld in enumerate(loads):
            sk = a.newlabel('L_gs')
            a(f"s_mov_b64 exec, s[{sPEND+2*j}:{sPEND+2*j+1}]\n s_cbranch_execz {sk}\n {ld[0]}")
            a.label(sk)
        a(f"s_mov_b64 exec, {FULL}\n s_waitcnt vmcnt(0)")
        if fast is not None and check is None:
            alltags = [t for ld in loads for t in ld[1]]
            a(f"v_xor_b32 v{fast}, v{vtag}, v{alltags[0]}\n v_xor_b32 v{fast+1}, v{vtag}, v{alltags[1]}")
            for k, t in enumerate(alltags[2:]):
                a(f"v_bitop3_b32 v{fast + k % 2}, v{fast + k % 2}, v{t}, v{vtag} bitop3:0xf6")
            a(f"v_or_b32 v{fast}, v{fast}, v{fast+1}\n v_cmp_ne_u32 vcc, 0, v{fast}\n s_cbranch_vccz {done}")
        for j, ld in enumerate(loads):
            p = f"s[{sPEND+2*j}:{sPEND+2*j+1}]"
            if check: check(j)
            else:
                tags = ld[1]
                a(f"v_cmp_ne_u32 vcc, v{vtag}, v{tags[0]}")
                for t in tags[1:]:
                    a(f"v_cmp_ne_u32 s[{sANY}:{sANY+1}], v{vtag}, v{t}\n s_or_b64 vcc, vcc, s[{sANY}:{sANY+1}]")
            a(f"s_and_b64 {p}, {p}, vcc")
        a(f"s_mov_b64 s[{sANY}:{sANY+1}], 0")
        for j in range(n):
            a(f"s_or_b64 s[{sANY}:{sANY+1}], s[{sANY}:{sANY+1}], s[{sPEND+2*j}:{sPEND+2*j+1}]")
        a(f"""s_cbranch_scc0 {done}
        s_sub_u32 s{sCNT}, s{sCNT}, 1
        s_cbranch_scc1 {done}
        s_sleep {sleep}
        s_branch {lp}""")
        a.label(done)
        a(f"s_mov_b64 exec, {FULL}")

    DPPQ = "row_mask:0xf bank_mask:0xf"
    def red8(op, vs):
        for pat in ("quad_perm:[1,0,3,2]", "quad_perm:[2,3,0,1]", "row_half_mirror"):
            for v in vs: a(f"{op}_dpp v{v}, v{v}, v{v} {pat} {DPPQ}")
    def red32(op, v, t):
        red8(op, [v])
        a(f"{op}_dpp v{v}, v{v}, v{v} row_mirror {DPPQ}")
        a(f"v_mov_b32 v{t}, v{v}\n v_permlane16_swap_b32 v{v}, v{t}\n {op} v{v}, v{v}, v{t}")
    def ln_finish(vm_, vv):
        a(f"v_mul_f32 v{vv}, {f2u(1.0/576)}, v{vv}")
        rnd(vv, vv); rnd(vm_, vm_)
        a(f"v_add_f32 v{vv}, {f2u(1e-5)}, v{vv}")
        rnd(vv, vv)
        a(f"v_sqrt_f32 v{vv}, v{vv}")
        rnd(vv, vv)
        a(f"v_rcp_f32 v{vv}, v{vv}")
    MF = "v_mfma_f32_16x16x32_bf16"

    a(f"""s_cmp_ge_u32 s2, 256
    s_cbranch_scc1 L_end
    s_load_dwordx16 s[16:31], s[0:1], 0
    s_load_dwordx2 s[40:41], s[0:1], 96
    s_load_dwordx8 s[32:39], s[0:1], 64
    v_lshrrev_b32 v1, 6, v0
    s_and_b32 s8, s2, 7
    v_readfirstlane_b32 s{sWAVE}, v1
    s_lshl_b32 s8, s8, 2
    s_lshr_b32 s8, 0x57136420, s8
    s_and_b32 s8, s8, 7
    s_andn2_b32 s{sR}, s2, 7
    s_or_b32 s{sR}, s{sR}, s8
    s_lshr_b32 s{sPAIR}, s{sR}, 1
    s_and_b32 s{sHALF}, s{sR}, 1
    s_mov_b64 {FULL}, -1
    v_and_b32 v4, 63, v0""")
    if debug: a("v_mov_b32 v7, 0")
    a(f"s_cmp_ge_u32 s{sWAVE}, 4\n s_cbranch_scc1 L_ctrl")

    vKO, vVO, vTAG = 1, 2, 3
    RING = 64
    NG = 17
    sOFF, sCNTG = 10, 93
    def tile(slot, i): return RING + 32 * slot + 4 * i
    def sreg(g): return 32 + g if g < 16 else 56
    a(f"""v_bfe_u32 v5, v4, 2, 2
    v_lshlrev_b32 v5, 8, v5
    v_lshrrev_b32 v6, 4, v4
    v_lshlrev_b32 v6, 6, v6
    v_and_b32 v{vKO}, 3, v4
    v_lshlrev_b32 v{vKO}, 4, v{vKO}
    v_add3_u32 v{vKO}, v{vKO}, v5, v6
    v_lshlrev_b32 v{vVO}, 4, v4
    s_lshl_b32 s8, s{sWAVE}, 12
    v_add_u32 v{vKO}, s8, v{vKO}
    v_add_u32 v{vVO}, s8, v{vVO}
    s_cmp_lt_u32 s{sPAIR}, {72 if uneven else 0}
    s_cselect_b32 s11, 17, 16
    s_sub_u32 s12, 32, s11
    s_cmp_eq_u32 s{sHALF}, 0
    s_cselect_b32 s{sCNTG}, s11, s12
    s_cselect_b32 s11, 0, s11
    s_lshl_b32 s9, s{sPAIR}, 20
    s_lshl_b32 s11, s11, 15
    s_add_u32 s9, s9, s11
    s_lshl_b32 s12, s{sCNTG}, 15
    s_mov_b32 s{sOFF}, 0
    s_waitcnt lgkmcnt(0)""")
    srd(SRD_A, sK, 's12', 9)
    vm = []
    def rnd_l(dst, src): return [f"v_cvt_pk_bf16_f32 v{dst}, v{src}, v{src}", f"v_lshlrev_b32 v{dst}, 16, v{dst}"]
    def round_(g, work=(), bar=None, pre=None, dp=None, late=(), span=8):
        slot = g % 6
        isK = g < NG
        if g == NG: a(f"s_mov_b32 s{sOFF}, 0")
        sr = SRD_A if isK else SRD_B
        work = list(work); n = len(work)
        dp = dp or depth
        late = list(late); l0 = dp - 1
        for i in range(8):
            if bar == i: a("s_barrier")
            if len(vm) >= dp: a(f"s_waitcnt vmcnt({dp-1})")
            if i == 0 and pre: pre()
            if i == 4: a(f"s_add_u32 s11, s{sOFF}, 16384")
            t = tile(slot, i)
            a(f"buffer_load_dwordx4 v[{t}:{t+3}], v{vKO if isK else vVO}, s[{sr}:{sr+3}], s{sOFF if i < 4 else 11} offen offset:{(i%4)*1024}{kf if isK else vf}")
            vm.append(('g', g))
            if late:
                if i < l0:
                    for ins in work[i * n // l0:(i + 1) * n // l0]: a(ins)
                else:
                    m_ = len(late); k_ = 8 - l0
                    for ins in late[(i - l0) * m_ // k_:(i - l0 + 1) * m_ // k_]: a(ins)
            else:
                for ins in work[i * n // span:(i + 1) * n // span]: a(ins)
        a(f"s_add_u32 s{sOFF}, s{sOFF}, 32768")
    def wait_for(key):
        last = max(i for i, k in enumerate(vm) if k == key)
        n = len(vm) - 1 - last
        assert n <= 63
        a(f"s_waitcnt vmcnt({n})")
    stamp(0)
    round_(0, bar=first)
    srd(SRD_B, sV, 's12', 9)
    srd(SRD_WS, sWS, WS_SIZE)
    a(f"""s_mov_b32 s{sM1}, 0x22222222
    s_mov_b32 s{sM1+1}, 0x22222222
    s_mov_b32 s{sM3}, 0x88888888
    s_mov_b32 s{sM3+1}, 0x88888888
    s_mov_b32 s{sM23}, 0xcccccccc
    s_mov_b32 s{sM23+1}, 0xcccccccc
    v_mov_b32 v57, 0xff7fffff""")
    for g_ in range(1, 6): round_(g_)
    stamp(1)
    a("s_barrier")
    stamp(2)
    a(f"""v_bfe_u32 v5, v4, 3, 1
    v_lshlrev_b32 v5, 8, v5
    v_lshrrev_b32 v6, 4, v4
    v_lshlrev_b32 v6, 6, v6
    v_and_b32 v16, 3, v4
    v_lshlrev_b32 v16, 4, v16
    v_add3_u32 v5, v5, v6, v16
    v_add_u32 v5, {L_QB}, v5
    v_mov_b32 v6, {L_TAG}
    ds_read_b128 v[16:19], v5
    ds_read_b32 v{vTAG}, v6
    v_and_b32 v20, 4, v4
    v_cmp_eq_u32 vcc, 0, v20
    s_mov_b32 s12, {f2u(128 ** -0.5)}
    s_waitcnt lgkmcnt(0)""")
    for i in range(4): a(f"v_cndmask_b32 v{8+i}, 0, v{16+i}, vcc")
    for i in range(4): a(f"v_sub_u32 v{12+i}, v{16+i}, v{8+i}")
    def kproc(g):
        slot = g % 6; L = []
        for ac in range(4):
            t = tile(slot, 2 * ac)
            L.append(f"{MF} v[{16+4*ac}:{19+4*ac}], v[8:11], v[{t}:{t+3}], 0")
        for ac in range(4):
            t = tile(slot, 2 * ac + 1)
            L.append(f"{MF} v[{16+4*ac}:{19+4*ac}], v[12:15], v[{t}:{t+3}], v[{16+4*ac}:{19+4*ac}]")
        for ac in range(4):
            L.append(f"v_mov_b32_dpp v{48+ac}, v{16+4*ac} quad_perm:[0,0,0,0] {DPPQ}")
        for c in range(1, 4):
            for ac in range(4):
                L.append(f"v_add_f32_dpp v{48+ac}, v{16+4*ac+c}, v{48+ac} quad_perm:[{c},{c},{c},{c}] {DPPQ}")
        L += [f"v_cndmask_b32 v48, v48, v49, s[{sM1}:{sM1+1}]", f"v_cndmask_b32 v50, v50, v51, s[{sM3}:{sM3+1}]",
              f"v_cndmask_b32 v48, v48, v50, s[{sM23}:{sM23+1}]"]
        L += rnd_l(48, 48) + ["v_mul_f32 v48, s12, v48"] + rnd_l(sreg(g), 48)
        if g >= 15:
            L.append(f"s_cmp_gt_u32 s{sCNTG}, {g}\n s_cselect_b64 vcc, -1, 0\n v_cndmask_b32 v{sreg(g)}, v57, v{sreg(g)}, vcc")
        return L
    for ins in kproc(0): a(ins)
    round_(6, kproc(1) + kproc(2), dp=cdepth); round_(7, kproc(3) + kproc(4), dp=cdepth); round_(8, kproc(5) + kproc(6), dp=cdepth)
    for g_ in range(9, NG): round_(g_, kproc(g_ - 2))
    round_(NG, kproc(NG - 2), late=kproc(NG - 1))
    stamp(3)
    class Cap:
        def __init__(s): s.L = []
        def __call__(s, t): s.L += [x.strip() for x in t.split('\n') if x.strip() and not x.strip().startswith(';')]
    def red8w(W, op, vs):
        for pat in ("quad_perm:[1,0,3,2]", "quad_perm:[2,3,0,1]", "row_half_mirror"):
            for v in vs: W(f"{op}_dpp v{v}, v{v}, v{v} {pat} {DPPQ}")
    def red32w(W, op, v, t):
        red8w(W, op, [v])
        W(f"{op}_dpp v{v}, v{v}, v{v} row_mirror {DPPQ}")
        W(f"v_mov_b32 v{t}, v{v}\n v_permlane16_swap_b32 v{v}, v{t}\n {op} v{v}, v{v}, v{t}")
    pr = [sreg(g_) for g_ in range(NG)]
    W = Cap()
    W("v_max3_f32 v48, v32, v33, v34")
    for i in range(35, 47, 2): W(f"v_max3_f32 v48, v48, v{i}, v{i+1}")
    W("v_max3_f32 v48, v48, v47, v56")
    red32w(W, "v_max_f32", 48, 49)
    W(f"s_mov_b32 s12, {f2u(L2E)}")
    tmp = list(range(16, 32)) + [50]
    for t, r in zip(tmp, pr): W(f"v_sub_f32 v{t}, v{r}, v48")
    for t in tmp: W(f"v_mul_f32 v{t}, s12, v{t}")
    for t in tmp: W(f"v_exp_f32 v{t}, v{t}")
    for st in (8, 4, 2, 1):
        for i in range(st): W(f"v_add_f32 v{16+i}, v{16+i}, v{16+i+st}")
    W("v_add_f32 v50, v50, v16")
    red32w(W, "v_add_f32", 50, 49)
    W(f"""v_mov_b32 v49, v{vTAG}
    v_mov_b32 v51, v{vTAG}
    v_lshrrev_b32 v5, 5, v4
    v_lshlrev_b32 v5, 4, v5
    s_lshl_b32 s8, s{sR}, 7
    s_lshl_b32 s9, s{sWAVE}, 5
    s_add_u32 s8, s8, s9
    s_add_u32 s8, s8, {WS_ST}""")
    W.L.append(f"s_mov_b32 exec_lo, 1\n s_mov_b32 exec_hi, 1\n buffer_store_dwordx4 v[48:51], v5, {WS}, s8 offen sc1\n s_mov_b64 exec, -1")
    W(f"""v_and_b32 v6, 7, v4
    v_lshlrev_b32 v6, 5, v6
    v_add_u32 v6, v6, v5
    s_lshl_b32 s13, s{sPAIR}, 8
    s_add_u32 s13, s13, {WS_ST}""")
    round_(NG + 1, W.L, span=4)
    round_(NG + 2); round_(NG + 3)
    polls = [(f"buffer_load_dwordx4 v[52:55], v6, {WS}, s13 offen sc1", [53, 55])]
    def do_polls():
        for p in polls: a(p[0]); vm.append(('poll', 1))
    W = Cap()
    W(f"""v_lshrrev_b32 v5, 5, v4
    v_lshlrev_b32 v5, 6, v5
    v_bfe_u32 v48, v4, 2, 2
    v_lshlrev_b32 v48, 4, v48
    v_add_u32 v5, v5, v48
    v_and_b32 v48, 3, v4
    v_lshlrev_b32 v48, 2, v48
    v_add_u32 v5, v5, v48
    v_bfe_u32 v48, v4, 4, 1
    v_lshlrev_b32 v48, 1, v48
    v_add_u32 v5, v5, v48
    s_mul_i32 s15, s{sWAVE}, {PT_W}
    s_add_u32 s15, s15, {L_PT}
    v_add_u32 v5, s15, v5""")
    round_(NG + 4, W.L, pre=do_polls)
    wait_for(('poll', 1))
    a(f"""v_cmp_ne_u32 vcc, v{vTAG}, v53
    v_cmp_ne_u32 s[8:9], v{vTAG}, v55
    s_or_b64 vcc, vcc, s[8:9]
    s_cbranch_vccz L_stat_ok""")
    gather(polls, vTAG)
    a.label("L_stat_ok")
    a("s_nop 1")
    stamp(4)
    W = Cap()
    W("v_mov_b32 v48, v52")
    red8w(W, "v_max_f32", [48])
    W(f"""v_sub_f32 v50, v52, v48
    v_mul_f32 v50, s12, v50
    v_exp_f32 v50, v50
    v_mul_f32 v50, v50, v54""")
    red8w(W, "v_add_f32", [50])
    W("v_rcp_f32 v51, v50")
    W("v_fma_f32 v49, -v50, v51, 1.0\n v_fma_f32 v51, v49, v51, v51")
    for r in pr: W(f"v_sub_f32 v{r}, v{r}, v48")
    for r in pr: W(f"v_mul_f32 v{r}, s12, v{r}")
    for r in pr: W(f"v_exp_f32 v{r}, v{r}")
    for r in pr: W(f"v_mul_f32 v{r}, v{r}, v51")
    for i, r in enumerate(pr): W(f"v_cvt_pk_bf16_f32 v{r}, v{r}, v{r}\n ds_write_b16 v5, v{r} offset:{i*128}")
    W(f"""v_and_b32 v6, 1, v4
    v_lshlrev_b32 v6, 6, v6
    v_lshrrev_b32 v5, 4, v4
    v_lshlrev_b32 v5, 4, v5
    v_add3_u32 v5, v5, v6, s15
    s_mov_b32 s8, 0x05040100
    s_mov_b32 s9, 0x07060302
    s_waitcnt lgkmcnt(0)
    ds_read_b128 v[8:11], v5""")
    PW = W.L
    def vproc(j):
        g = NG + j; slot = g % 6; pa = 8 + 4 * (j % 2); L = []
        def perms(w4):
            T = 16 + 8 * (w4 % 2)
            for u in range(4): L.append(f"v_perm_b32 v{T+u}, v{tile(slot,2*u+1)+w4}, v{tile(slot,2*u)+w4}, s8")
            for u in range(4): L.append(f"v_perm_b32 v{T+4+u}, v{tile(slot,2*u+1)+w4}, v{tile(slot,2*u)+w4}, s9")
        def mf(w4):
            T = 16 + 8 * (w4 % 2)
            for h in range(2):
                ac = 32 + 4 * (2 * w4 + h)
                c = "0" if j == 0 else f"v[{ac}:{ac+3}]"
                L.append(f"{MF} v[{ac}:{ac+3}], v[{pa}:{pa+3}], v[{T+4*h}:{T+4*h+3}], {c}")
        perms(0); perms(1)
        L.append("s_waitcnt lgkmcnt(0)")
        if j + 1 < NG:
            pn = 8 + 4 * ((j + 1) % 2)
            L.append(f"ds_read_b128 v[{pn}:{pn+3}], v5 offset:{(j+1)*128}")
        mf(0); perms(2); mf(1); perms(3); mf(2); mf(3)
        if 14 <= j < NG - 1:
            L.append(f"s_cmp_eq_u32 s{sCNTG}, {j+1}\n s_cbranch_scc1 L_vdone")
        return L
    round_(NG + 5, PW + vproc(0))
    round_(NG + 6, vproc(1) + vproc(2)); round_(NG + 7, vproc(3) + vproc(4)); round_(NG + 8, vproc(5) + vproc(6))
    for n in range(9, NG): round_(NG + n, vproc(n - 2), dp=(edepth if n >= NG - eN else None))
    for j in (NG - 2, NG - 1):
        wait_for(('g', NG + j))
        for ins in vproc(j): a(ins)
    a.label("L_vdone")
    a("s_nop 7")
    stamp(5)
    a(f"""v_lshlrev_b32 v5, 5, v4
    s_add_u32 s15, s15, {OB_OFF}
    v_add_u32 v5, s15, v5
    s_waitcnt lgkmcnt(0)
    s_mov_b64 exec, 0xffff""")
    for e in range(8):
        a(f"ds_write2_b32 v5, v{32+4*e}, v{33+4*e} offset0:{e} offset1:{128+e}")
    a("s_mov_b64 exec, -1\n s_waitcnt lgkmcnt(0)\n s_barrier")
    dump_stamps()
    a("s_endpgm")

    a.label("L_ctrl")
    vT = 3
    a(f"""s_setprio 3
    s_sub_u32 s{sWAVE}, s{sWAVE}, 4
    s_add_u32 s8, s{sPAIR}, 56
    s_cmp_eq_u32 s{sHALF}, 0
    s_cselect_b32 s{sU}, s{sPAIR}, s8
    s_cselect_b32 s9, 1000, s{sPAIR}
    s_cmp_lt_u32 s9, 72
    s_cselect_b32 s{sMI}, s9, -1
    s_cselect_b32 s{sU}, 1000, s{sU}
    s_cmp_lt_u32 s{sU}, 144
    s_cselect_b32 s{sWOT}, s{sU}, -1
    ; P1: 128 <= u < 182, wave < 3
    s_sub_u32 s8, 181, s{sU}
    s_cmp_lt_u32 s8, 54
    s_cselect_b32 s{sP1}, s8, -1
    s_cmp_lt_u32 s{sWAVE}, 3
    s_cselect_b32 s{sP1}, s{sP1}, -1
    v_lshrrev_b32 v8, 3, v4
    v_and_b32 v9, 7, v4
    v_lshlrev_b32 v9, 4, v9
    v_mov_b32 v5, 0
    s_cmp_lg_u32 s{sP1}, -1
    s_waitcnt lgkmcnt(0)
    s_cbranch_scc0 L_notP1""")

    def lane_consts():
        a(f"""v_lshrrev_b32 v10, 4, v4
        v_lshlrev_b32 v10, 3, v10
        v_bfe_u32 v11, v4, 2, 2
        v_add_u32 v11, v10, v11
        v_lshlrev_b32 v10, 7, v11
        v_and_b32 v12, 3, v4
        v_lshlrev_b32 v12, 3, v12
        v_add_u32 v10, v10, v12
        v_lshrrev_b32 v24, 5, v4
        v_and_b32 v25, 31, v4""")
    def epoch_load():
        srd(SRD_WS, sWS, WS_SIZE)
        a(f"buffer_load_dword v{vT}, v5, {WS}, 0 offen sc1")
    def dma_loop(srd_n, step, nins, pace=None):
        lp = a.newlabel('L_dma')
        a(f"s_add_u32 s10, s9, {nins*1024}")
        a.label(lp)
        if pace is not None: a(f"s_waitcnt vmcnt({pace})")
        a(f"""s_mov_b32 m0, s9
        s_add_u32 s9, s9, 1024
        buffer_load_dwordx4 v13, s[{srd_n}:{srd_n+3}], s8 offen{wf} lds
        s_add_u32 s8, s8, {step}
        s_cmp_lt_u32 s9, s10
        s_cbranch_scc1 {lp}""")
    def wo_dma():
        sk = a.newlabel('L_nowo')
        a(f"s_cmp_eq_u32 s{sWOT}, -1\n s_cbranch_scc1 {sk}")
        srd(SRD_B, sWO, 4096 * 1152)
        a(f"""s_mul_i32 s8, s{sWOT}, 57
        s_lshr_b32 s8, s8, 9
        s_mul_i32 s9, s8, 9
        s_sub_u32 s9, s{sWOT}, s9
        s_lshl_b32 s8, s8, 8
        s_lshl_b32 s10, s{sWAVE}, 6
        s_add_u32 s8, s8, s10
        s_mul_i32 s8, s8, 1152
        s_lshl_b32 s9, s9, 7
        s_add_u32 s8, s8, s9
        s_lshl_b32 s9, s{sWAVE}, 13
        s_add_u32 s9, s9, {L_WO}
        v_mul_u32_u24 v13, 1152, v8
        v_add_u32 v13, v13, v9""")
        dma_loop(SRD_B, 8 * 1152, 8)
        a.label(sk)
    def tr_pair(r, vaddr, off, pitch4=512):
        a(f"ds_read_b64_tr_b16 v[{r}:{r+1}], v{vaddr} offset:{off}\n ds_read_b64_tr_b16 v[{r+2}:{r+3}], v{vaddr} offset:{off+pitch4}")

    srd(SRD_B, sWM, 576 * 6912)
    a(f"""v_mul_u32_u24 v13, 6912, v8
    v_add_u32 v13, v13, v9
    s_mul_i32 s8, s{sWAVE}, {192*6912}
    s_lshl_b32 s9, s{sP1}, 7
    s_add_u32 s8, s8, s9
    s_mul_i32 s9, s{sWAVE}, 24576""")
    srd(SRD_A, sC, 8 * 1152)
    a(f"""v_and_b32 v14, 7, v4
    v_mul_u32_u24 v14, 1152, v14
    v_bfe_u32 v15, v4, 3, 1
    v_mul_u32_u24 v15, 192, v15
    v_add_u32 v14, v14, v15
    v_lshrrev_b32 v15, 4, v4
    v_lshlrev_b32 v15, 4, v15
    v_add_u32 v14, v14, v15
    s_mul_i32 s11, s{sWAVE}, 384""")
    for s_ in range(3):
        a(f"buffer_load_dwordx4 v[{112+4*s_}:{115+4*s_}], v14, s[{SRD_A}:{SRD_A+3}], s11 offen offset:{64*s_}")
    epoch_load()
    dma_loop(SRD_B, 8 * 6912, 6)
    stamp(0)
    a(f"v_mov_b32 v6, {L_CNT}\n ds_write_b32 v6, v5")
    lane_consts()
    for i, c in enumerate((-L2E_HI, -L2E_LO, LN2)):
        a(f"v_mov_b32 v{44+2*i}, {f2u(c)}\n v_mov_b32 v{45+2*i}, {f2u(c)}")
    a(f"v_mov_b32 v50, 1.0\n v_mov_b32 v51, 1.0\n s_mov_b32 s11, {f2u(127.5)}\n s_waitcnt vmcnt(6)\n v_add_u32 v{vT}, {TAG_INC}, v{vT}")
    for d2 in range(6):
        B = (52, 64)
        def P(k, o): return f"v[{B[k]+o}:{B[k]+o+1}]"
        for _ in range(3):
            a(f"s_mov_b32 m0, s9\n s_add_u32 s9, s9, 1024\n buffer_load_dwordx4 v13, s[{SRD_B}:{SRD_B+3}], s8 offen{wf} lds\n s_add_u32 s8, s8, {8*6912}")
        if d2 == 5: a("s_waitcnt lgkmcnt(0)\n s_barrier")
        for k in range(2): unpack(B[k], 112 + 2 * d2 + k)
        for k in range(2): a(f"v_pk_mul_f32 {P(k,2)}, {P(k,0)}, v[44:45]")
        for k in range(2): a(f"v_pk_fma_f32 {P(k,4)}, {P(k,0)}, v[44:45], {P(k,2)} neg_lo:[0,0,1] neg_hi:[0,0,1]")
        for k in range(2): a(f"v_min_f32 v{B[k]+2}, s11, v{B[k]+2}\n v_min_f32 v{B[k]+3}, s11, v{B[k]+3}")
        for k in range(2): a(f"v_pk_fma_f32 {P(k,4)}, {P(k,0)}, v[46:47], {P(k,4)}")
        for k in range(2): a(f"v_exp_f32 v{B[k]+6}, v{B[k]+2}\n v_exp_f32 v{B[k]+7}, v{B[k]+3}")
        for k in range(2): a(f"v_pk_mul_f32 {P(k,4)}, {P(k,4)}, v[48:49]")
        for k in range(2): a(f"v_pk_fma_f32 {P(k,6)}, {P(k,6)}, {P(k,4)}, {P(k,6)}")
        for k in range(2): a(f"v_pk_add_f32 {P(k,6)}, {P(k,6)}, v[50:51]")
        for k in range(2): a(f"v_rcp_f32 v{B[k]+2}, v{B[k]+6}\n v_rcp_f32 v{B[k]+3}, v{B[k]+7}")
        for k in range(2): a(f"v_pk_mul_f32 {P(k,8)}, {P(k,0)}, {P(k,2)}")
        for k in range(2): a(f"v_pk_fma_f32 {P(k,4)}, {P(k,8)}, {P(k,6)}, {P(k,0)} neg_lo:[1,0,0] neg_hi:[1,0,0]")
        for k in range(2): a(f"v_pk_fma_f32 {P(k,8)}, {P(k,4)}, {P(k,2)}, {P(k,8)}")
        for k in range(2): a(f"v_cvt_pk_bf16_f32 v{112+2*d2+k}, v{B[k]+8}, v{B[k]+9}")
    a(f"s_mul_i32 s8, s{sWAVE}, 24576\n v_add_u32 v14, s8, v10")
    stamp(3)
    for third in range(3):
        a(f"s_waitcnt vmcnt({16 - 8*third})")
        if third == 2: stamp(1)
        for s_ in (2*third, 2*third+1):
            for jn in range(4): tr_pair(80 + 16 * (s_ % 2) + 4 * jn, 14, s_ * 4096 + jn * 32)
        for s_ in (2*third, 2*third+1):
            hi = s_ // 3
            for jn in range(4):
                if jn % 2 == 0: a(f"s_waitcnt lgkmcnt({12 - 8*(s_ % 2) - 2*jn})")
                r = 80 + 16 * (s_ % 2) + 4 * jn; ac = 32 + 16 * hi + 4 * jn
                c = "0" if s_ % 3 == 0 else f"v[{ac}:{ac+3}]"
                a(f"{MF} v[{ac}:{ac+3}], v[{112+4*(s_%3)}:{115+4*(s_%3)}], v[{r}:{r+3}], {c}")
    a(f"""s_mov_b32 s8, 0
    s_mov_b32 s9, -1
    s_lshl_b32 s10, s{sWAVE}, 1
    v_add_u32 v14, s10, v24
    v_lshlrev_b32 v14, 11, v14
    v_bfe_u32 v15, v4, 4, 1
    v_lshlrev_b32 v15, 10, v15
    v_add_u32 v14, v14, v15
    v_and_b32 v15, 15, v4
    v_lshlrev_b32 v15, 2, v15
    v_add_u32 v14, v14, v15
    v_add_u32 v14, {L_RB}, v14
    v_mov_b32 v15, 1""")
    for i in range(16): a(f"v_cndmask_b32 v{32+i}, v{32+i}, v{48+i}, s[8:9]")
    for jn in range(4):
        for rp in range(2):
            a(f"ds_write2_b32 v14, v{32+4*jn+2*rp}, v{33+4*jn+2*rp} offset0:{128*rp + 16*jn} offset1:{128*rp + 64 + 16*jn}")
    a(f"""v_lshlrev_b32 v14, 8, v8
    v_add_u32 v14, v14, v9
    v_add_u32 v14, {L_RB}, v14
    s_waitcnt lgkmcnt(0)
    s_mov_b64 exec, 1
    ds_add_rtn_u32 v15, v6, v15
    s_waitcnt lgkmcnt(0)
    s_mov_b64 exec, -1
    v_readfirstlane_b32 s8, v15
    s_cmp_eq_u32 s8, 2
    s_cbranch_scc0 L_P1_notlast""")
    for p in range(6):
        a(f"ds_read_b128 v[{32+8*p}:{35+8*p}], v14 offset:{p*2048}\n ds_read_b128 v[{36+8*p}:{39+8*p}], v14 offset:{p*2048+128}")
    a(f"""v_mov_b32 v81, v{vT}
    v_mov_b32 v83, v{vT}
    v_mov_b32 v85, v{vT}
    v_mov_b32 v87, v{vT}
    v_mul_u32_u24 v14, {MG_B}, v8
    v_add_u32 v14, v14, v9
    s_lshl_b32 s8, s{sP1}, 8
    s_add_u32 s8, s8, {WS_MG}
    s_waitcnt lgkmcnt(0)""")
    for p in range(1, 6):
        for i in range(0, 8, 2): a(f"v_pk_add_f32 v[{32+i}:{33+i}], v[{32+i}:{33+i}], v[{32+8*p+i}:{33+8*p+i}]")
    a(f"""v_cvt_pk_bf16_f32 v80, v32, v33
    v_cvt_pk_bf16_f32 v82, v34, v35
    v_cvt_pk_bf16_f32 v84, v36, v37
    v_cvt_pk_bf16_f32 v86, v38, v39
    buffer_store_dwordx4 v[80:83], v14, {WS}, s8 offen sc1
    buffer_store_dwordx4 v[84:87], v14, {WS}, s8 offen offset:128 sc1""")
    a.label("L_P1_notlast")
    stamp(2)
    srd(SRD_X, sX, 8 * 1152)
    a(f"s_mov_b32 s{sP2}, -1\n s_branch L_join")

    a.label("L_notP1")
    a(f"""s_add_u32 s8, s{sU}, 72
    s_cmp_lt_u32 s{sU}, 120
    s_cselect_b32 s{sP2}, s8, s{sMI}
    s_cmp_eq_u32 s{sWAVE}, 0
    s_cselect_b32 s{sP2}, s{sP2}, -1""")
    srd(SRD_X, sX, 8 * 1152)
    epoch_load()
    a(f"s_cmp_eq_u32 s{sP2}, -1\n s_cbranch_scc1 L_notP2")
    srd(SRD_B, sWQ, 576 * 8192)
    a(f"v_mul_u32_u24 v14, 1152, v8\n v_add_u32 v14, v14, v9")
    for i in range(9):
        a(f"buffer_load_dwordx4 v[{32+4*i}:{35+4*i}], v14, s[{SRD_X}:{SRD_X+3}], 0 offen offset:{128*i}")
    a(f"""s_lshr_b32 s12, s{sP2}, 6
    v_lshlrev_b32 v13, 13, v8
    v_add_u32 v13, v13, v9
    s_mul_i32 s8, s12, {192*8192}
    s_and_b32 s9, s{sP2}, 63
    s_lshl_b32 s9, s9, 7
    s_add_u32 s8, s8, s9
    s_mov_b32 s9, {L_WO}""")
    dma_loop(SRD_B, 8 * 8192, 24)
    stamp(0)
    a("s_barrier")
    a(f"s_mul_i32 s8, s12, 384\n s_mov_b32 s13, {L_HB}")
    for i in range(6):
        for idn in range(64 * i, 64 * i + 64): assert (idn * 1366) >> 16 == idn // 48
        a(f"""v_add_u32 v14, {64*i}, v4
        v_mul_u32_u24 v{80+i}, 1366, v14
        v_lshrrev_b32 v{80+i}, 16, v{80+i}
        v_mul_u32_u24 v15, 48, v{80+i}
        v_sub_u32 v15, v14, v15
        v_lshlrev_b32 v15, 3, v15
        v_mul_u32_u24 v14, 1152, v{80+i}
        v_add_u32 v14, v14, v15
        buffer_load_dwordx2 v[{68+2*i}:{69+2*i}], v14, s[{SRD_X}:{SRD_X+3}], s8 offen
        v_mul_u32_u24 v{92+i}, {MG_B}, v{80+i}
        v_lshl_add_u32 v{92+i}, v15, 1, v{92+i}
        v_mul_u32_u24 v{98+i}, 400, v{80+i}
        v_add3_u32 v{98+i}, v{98+i}, v15, s13
        v_lshlrev_b32 v{80+i}, 3, v{80+i}
        v_add_u32 v{80+i}, s13, v{80+i}""")
    lane_consts()
    a(f"s_waitcnt vmcnt(30)\n v_add_u32 v{vT}, {TAG_INC}, v{vT}")
    for d in range(36): unpack(160 + 2 * d, 32 + d)
    a("v_pk_add_f32 v[16:17], v[160:161], v[162:163]\n v_pk_add_f32 v[18:19], v[164:165], v[166:167]")
    for d in range(4, 36, 2):
        a(f"v_pk_add_f32 v[16:17], v[16:17], v[{160+2*d}:{161+2*d}]\n v_pk_add_f32 v[18:19], v[18:19], v[{162+2*d}:{163+2*d}]")
    a("v_pk_add_f32 v[16:17], v[16:17], v[18:19]\n v_add_f32 v16, v16, v17")
    red8("v_add_f32", [16])
    a(f"v_mul_f32 v16, {f2u(1.0/576)}, v16\n v_mov_b32 v20, 0\n v_mov_b32 v21, 0\n v_mov_b32 v22, 0\n v_mov_b32 v23, 0\n v_mov_b32 v17, v16")
    for d in range(36): a(f"v_pk_add_f32 v[{160+2*d}:{161+2*d}], v[{160+2*d}:{161+2*d}], v[16:17] neg_lo:[0,1] neg_hi:[0,1]")
    for d in range(36):
        ac = 20 + 2 * (d % 2)
        a(f"v_pk_fma_f32 v[{ac}:{ac+1}], v[{160+2*d}:{161+2*d}], v[{160+2*d}:{161+2*d}], v[{ac}:{ac+1}]")
    a("v_pk_add_f32 v[20:21], v[20:21], v[22:23]\n v_add_f32 v17, v20, v21")
    red8("v_add_f32", [17])
    ln_finish(16, 17)
    a(f"""v_lshlrev_b32 v14, 3, v8
    v_add_u32 v14, s13, v14
    ds_write_b64 v14, v[16:17] offset:3328
    s_waitcnt lgkmcnt(0)""")
    for i in range(6): a(f"ds_read_b64 v[{104+2*i}:{105+2*i}], v{80+i} offset:3328")
    a(f"v_add_u32 v14, {L_WO}, v10\n s_waitcnt vmcnt(0) lgkmcnt(0)")
    for s_ in range(6):
        for jn in range(4): tr_pair(160 + 16 * s_ + 4 * jn, 14, s_ * 4096 + jn * 32)
    for i in range(6):
        for k in range(2):
            d = 68 + 2 * i + k; o = 32 + 2 * (d - 68)
            unpack(o, d)
            a(f"v_sub_f32 v{o}, v{o}, v{104+2*i}\n v_sub_f32 v{o+1}, v{o+1}, v{104+2*i}\n v_cvt_pk_bf16_f32 v{d}, v{o}, v{o+1}")
            unpack(o, d)
            a(f"v_mul_f32 v{o}, v{o}, v{105+2*i}\n v_mul_f32 v{o+1}, v{o+1}, v{105+2*i}\n v_cvt_pk_bf16_f32 v{d}, v{o}, v{o+1}")
            unpack(o, d)
    stamp(1)
    a(f"""v_mov_b32 v28, 1.0
    v_mov_b32 v29, 1.0
    s_mul_i32 s15, s12, 768
    s_add_u32 s15, s15, {WS_MG}
    v_and_b32 v30, 7, v4
    v_mul_u32_u24 v30, 400, v30
    v_lshrrev_b32 v15, 4, v4
    v_lshlrev_b32 v15, 4, v15
    v_add3_u32 v30, v30, v15, s13
    v_bfe_u32 v31, v4, 4, 1
    v_lshlrev_b32 v31, 17, v31
    v_and_b32 v15, 15, v4
    v_lshlrev_b32 v15, 3, v15
    v_add_u32 v31, v31, v15
    s_lshl_b32 s14, s12, 18
    s_and_b32 s9, s{sP2}, 63
    s_lshl_b32 s9, s9, 9
    s_add_u32 s14, s14, s9
    s_add_u32 s14, s14, {WS_QP}""")
    loads = []
    for i in range(6):
        loads.append((f"buffer_load_dwordx4 v[{104+8*i}:{107+8*i}], v{92+i}, {WS}, s15 offen sc1", [105+8*i, 107+8*i]))
        loads.append((f"buffer_load_dwordx4 v[{108+8*i}:{111+8*i}], v{92+i}, {WS}, s15 offen offset:2304 sc1", [109+8*i, 111+8*i]))
    if p2dry: a(f"s_waitcnt lgkmcnt(0)\n s_mov_b64 {FULL}, 0\n s_mov_b64 exec, 0")
    a.label("L_p2_go")
    gather(loads, vT, sleep=2, fast=26)
    stamp(2)
    for i in range(6):
        for k in range(2):
            d = 2 * i + k; ca = 108 + 8 * i + 2 * k; sa = 104 + 8 * i + 2 * k; T = 56 + 6 * k
            a(f"""v_lshlrev_b32 v{T}, 16, v{ca}
            v_and_b32 v{T+1}, 0xffff0000, v{ca}
            v_lshlrev_b32 v{T+2}, 16, v{sa}
            v_pk_add_f32 v[{T}:{T+1}], v[{T}:{T+1}], v[28:29]
            v_and_b32 v{T+3}, 0xffff0000, v{sa}
            v_cvt_pk_bf16_f32 v{T+4}, v{T}, v{T+1}
            v_lshlrev_b32 v{T}, 16, v{T+4}
            v_and_b32 v{T+1}, 0xffff0000, v{T+4}
            v_pk_mul_f32 v[{T}:{T+1}], v[{T}:{T+1}], v[{32+2*d}:{33+2*d}]
            v_cvt_pk_bf16_f32 v{T+4}, v{T}, v{T+1}
            v_lshlrev_b32 v{T}, 16, v{T+4}
            v_and_b32 v{T+1}, 0xffff0000, v{T+4}
            v_pk_add_f32 v[{T}:{T+1}], v[{T}:{T+1}], v[{T+2}:{T+3}]
            v_cvt_pk_bf16_f32 v{68+d}, v{T}, v{T+1}""")
        a(f"ds_write_b64 v{98+i}, v[{68+2*i}:{69+2*i}]")
    a("s_waitcnt lgkmcnt(0)")
    for s_ in range(6): a(f"ds_read_b128 v[{32+4*s_}:{35+4*s_}], v30 offset:{64*s_}")
    for i in range(16): a(f"v_mov_b32 v{105+2*i}, v{vT}")
    for s_ in range(6):
        a(f"s_waitcnt lgkmcnt({5-s_})")
        for jn in range(4):
            r = 160 + 16 * s_ + 4 * jn; ac = 64 + 4 * jn
            c = "0" if s_ == 0 else f"v[{ac}:{ac+3}]"
            a(f"{MF} v[{ac}:{ac+3}], v[{32+4*s_}:{35+4*s_}], v[{r}:{r+3}], {c}")
    for i in range(16): a(f"v_mov_b32 v{104+2*i}, v{64+i}")
    a("s_mov_b32 exec_hi, 0\n s_cbranch_execz L_p2_dry")
    for r in range(4):
        for jn in range(4):
            i = 4 * jn + r
            a(f"buffer_store_dwordx2 v[{104+2*i}:{105+2*i}], v31, {WS}, s14 offen offset:{jn*128} sc1")
        a("s_add_u32 s14, s14, 32768")
    a("s_mov_b64 exec, -1")
    stamp(3)
    a("s_branch L_join")
    a.label("L_p2_dry")
    if p2sleep: a(f"s_sleep {p2sleep}")
    a(f"s_mov_b64 {FULL}, -1\n s_mov_b64 exec, -1\n s_branch L_p2_go")

    a.label("L_notP2")
    stamp(0)
    a("s_barrier")
    lane_consts()
    a(f"s_cmp_eq_u32 s{sMI}, -1\n s_cbranch_scc1 L_noMa\n s_cmp_eq_u32 s{sWAVE}, 3\n s_cbranch_scc1 L_noMa")
    if not w1early: a("s_branch L_noMa")
    srd(SRD_A, sW1, 576 * 9216)
    a(f"""v_mul_u32_u24 v13, 9216, v8
    v_add_u32 v13, v13, v9
    s_sub_u32 s10, s{sWAVE}, 1
    s_mul_i32 s8, s10, {288*9216}
    s_lshl_b32 s9, s{sMI}, 7
    s_add_u32 s8, s8, s9
    s_mul_i32 s9, s10, 36864""")
    dma_loop(SRD_A, 8 * 9216, 36, pace=mpace)
    a(f"s_waitcnt vmcnt(36)\n s_branch L_o_tag")
    a.label("L_noMa")
    a("s_waitcnt vmcnt(0)")
    a.label("L_o_tag")
    a(f"v_add_u32 v{vT}, {TAG_INC}, v{vT}")
    a.label("L_join")

    a(f"s_cmp_eq_u32 s{sWAVE}, 3\n s_cbranch_scc0 L_noQ")
    a(f"""s_lshr_b32 s8, s{sPAIR}, 4
    s_lshl_b32 s8, s8, 15
    s_and_b32 s9, s{sPAIR}, 15
    s_lshl_b32 s9, s9, 11
    s_add_u32 s8, s8, s9
    s_add_u32 s13, s8, {WS_QP}
    s_add_u32 s14, s13, 0x40000
    s_add_u32 s15, s13, 0x80000
    v_lshlrev_b32 v15, 4, v4
    v_mov_b32 v14, {WS_MG}""")
    gather([(f"buffer_load_dwordx2 v[16:17], v14, {WS}, 0 offen sc1", [17])], vT, mask=1, sleep=4)
    stamp(4)
    loads = []
    for kt in range(3):
        for hh in range(2):
            r = 32 + 8 * kt + 4 * hh
            loads.append((f"buffer_load_dwordx4 v[{r}:{r+3}], v15, {WS}, s{13+kt} offen offset:{1024*hh} sc1", [r+1, r+3]))
    gather(loads, vT, sleep=2, fast=26)
    for hh in range(2):
        for k in range(2):
            r = 32 + 4 * hh + 2 * k
            a(f"v_add_f32 v{r}, v{r}, v{r+8}\n v_add_f32 v{r}, v{r}, v{r+16}")
        a(f"v_cvt_pk_bf16_f32 v{32+4*hh}, v{32+4*hh}, v{34+4*hh}")
    a(f"""v_lshlrev_b32 v14, 2, v4
    v_add_u32 v14, {L_QB}, v14
    ds_write_b32 v14, v32
    ds_write_b32 v14, v36 offset:256
    v_mov_b32 v14, {L_TAG}
    ds_write_b32 v14, v{vT}
    v_mov_b32 v16, 0
    v_mov_b32 v17, 0
    ds_write_b64 v14, v[16:17] offset:{L_ZERO - L_TAG}
    ds_write_b64 v14, v[16:17] offset:{L_ZERO - L_TAG + 8}
    s_waitcnt lgkmcnt(0)""")
    stamp(5)
    a.label("L_noQ")
    a("s_barrier")

    wo_dma()
    a(f"s_cmp_eq_u32 s{sMI}, -1\n s_cbranch_scc1 L_noM2")
    if not w1early:
        srd(SRD_A, sW1, 576 * 9216)
        a(f"""v_mul_u32_u24 v13, 9216, v8
        v_add_u32 v13, v13, v9
        s_mul_i32 s8, s{sWAVE}, {144*9216}
        s_lshl_b32 s9, s{sMI}, 7
        s_add_u32 s8, s8, s9
        s_mul_i32 s9, s{sWAVE}, 18432""")
        dma_loop(SRD_A, 8 * 9216, 18, pace=mpace2)
    srd(SRD_B, sW2, 4608 * 1152)
    a(f"""v_lshlrev_b32 v13, 4, v4
    s_mul_i32 s8, s{sMI}, 73728
    s_mul_i32 s9, s{sWAVE}, 18432
    s_add_u32 s8, s8, s9
    s_add_u32 s9, s9, 73728""")
    dma_loop(SRD_B, 1024, 18, pace=mpace2)
    a.label("L_noM2")
    a(f"""s_cmp_eq_u32 s{sWAVE}, 0
    s_cselect_b32 s8, s{sU}, -1
    s_cmp_lt_u32 s{sU}, 72
    s_cselect_b32 s{sB1}, s8, -1
    s_add_u32 s8, s{sU}, 184
    s_cmp_lt_u32 s{sU}, 104
    s_cselect_b32 s8, s8, -1
    s_cmp_eq_u32 s{sWAVE}, 2
    s_cselect_b32 s{sD}, s8, -1
    s_cmp_eq_u32 s{sWAVE}, 1
    s_cselect_b32 s{sD}, s{sU}, s{sD}
    s_cmp_eq_u32 s{sMI}, -1
    s_cselect_b32 s{sD}, s{sD}, -1""")
    a(f"""s_lshl_b32 s8, s{sWAVE}, 8
    s_add_u32 s8, s8, {L_PT + OB_OFF}
    v_lshlrev_b32 v2, 2, v4
    v_add_u32 v2, s8, v2
    v_lshlrev_b32 v13, 3, v4
    s_lshl_b32 s{sOPA}, s{sR}, 11
    s_lshl_b32 s9, s{sWAVE}, 9
    s_add_u32 s{sOPA}, s{sOPA}, s9
    s_add_u32 s{sOPA}, s{sOPA}, {WS_OP}
    v_mov_b32 v21, v{vT}""")
    a(f"s_cmp_eq_u32 s{sB1}, -1\n s_cbranch_scc1 L_noB1a")
    a(f"""s_mul_i32 s8, s{sB1}, 57
    s_lshr_b32 s8, s8, 9
    s_mul_i32 s9, s8, 9
    s_sub_u32 s9, s{sB1}, s9
    s_mul_i32 s10, s8, 1152
    s_lshl_b32 s11, s9, 7
    s_add_u32 s10, s10, s11
    v_lshlrev_b32 v14, 2, v25
    buffer_load_dword v30, v14, s[{SRD_X}:{SRD_X+3}], s10 offen
    s_mul_i32 s13, s8, {MG_B}
    s_lshl_b32 s11, s9, 8
    s_add_u32 s13, s13, s11
    s_add_u32 s13, s13, {WS_MG + 576*8}
    s_mul_i32 s{sX1A}, s8, 2304
    s_add_u32 s{sX1A}, s{sX1A}, s11
    s_add_u32 s{sX1A}, s{sX1A}, {WS_X1}
    s_lshl_b32 s10, s9, 12
    s_lshl_b32 s11, s8, 9
    s_add_u32 s10, s10, s11
    s_add_u32 s10, s10, {WS_YP}
    v_mul_u32_u24 v14, 36864, v24
    v_lshlrev_b32 v15, 4, v25
    v_add3_u32 v14, v14, v15, s10
    v_lshlrev_b32 v31, 3, v25""")
    for i in range(8): a(f"v_add_u32 v{144+i}, {i*73728}, v14")
    gather([(f"buffer_load_dwordx2 v[32:33], v31, {WS}, s13 offen sc1", [33])], vT, sleep=4)
    unpack(26, 32); unpack(28, 30)
    a.label("L_noB1a")
    a(f"s_cmp_eq_u32 s{sD}, -1\n s_cbranch_scc1 L_noDa")
    srd(SRD_A, sOUT, 4608 * 2)
    a(f"""s_lshr_b32 s8, s{sD}, 3
    s_lshl_b32 s8, s8, 4
    s_and_b32 s9, s{sD}, 3
    s_lshl_b32 s9, s9, 2
    s_add_u32 s8, s8, s9
    v_and_b32 v29, 3, v4
    v_add_u32 v29, s8, v29
    s_bfe_u32 s9, s{sD}, 0x10002
    s_lshl_b32 s9, s9, 2
    v_bfe_u32 v30, v4, 2, 2
    v_add_u32 v30, s9, v30
    v_lshrrev_b32 v14, 1, v29
    v_lshlrev_b32 v14, 3, v14
    v_mul_u32_u24 v15, {MG_B}, v30
    v_add_u32 v15, v15, v14
    v_mul_u32_u24 v27, 2304, v30
    v_add_u32 v27, v27, v14
    v_add_u32 v27, {WS_X1}, v27
    v_mul_u32_u24 v28, 1152, v30
    v_lshl_add_u32 v28, v29, 1, v28
    s_mov_b32 s13, {WS_MG + 1440*8}
    s_lshl_b32 s8, s{sD}, 6
    s_add_u32 s8, s8, {WS_ZP}
    v_lshrrev_b32 v14, 2, v4
    v_mul_u32_u24 v14, {ZP_S}, v14
    v_and_b32 v16, 3, v4
    v_lshlrev_b32 v16, 4, v16
    v_add3_u32 v14, v14, v16, s8""")
    for i in range(5): a(f"v_add_u32 v{144+i}, {i*16*ZP_S}, v14")
    gather([(f"buffer_load_dwordx2 v[32:33], v15, {WS}, s13 offen sc1", [33])], vT, sleep=4)
    a("v_and_b32 v29, 1, v29\n v_cmp_eq_u32 vcc, 0, v29")
    unpack(16, 32)
    a("v_cndmask_b32 v26, v17, v16, vcc")
    a.label("L_noDa")
    a(f"s_cmp_eq_u32 s{sMI}, -1\n s_cbranch_scc1 L_noMb")
    a(f"""s_lshl_b32 s8, s{sWAVE}, 1
    v_add_u32 v29, s8, v24
    v_mul_u32_u24 v14, {MG_B}, v29
    v_lshlrev_b32 v15, 3, v25
    v_add_u32 v14, v14, v15
    s_mov_b32 s13, {WS_MG + 864*8}
    s_mov_b32 s14, {WS_MG + 1152*8}
    v_mul_u32_u24 v26, 2304, v29
    v_add_u32 v26, v26, v15
    v_add_u32 v26, {WS_X1}, v26
    v_mul_u32_u24 v27, 1168, v29
    v_lshlrev_b32 v15, 2, v25
    v_add_u32 v27, v27, v15
    v_add_u32 v27, {L_H2}, v27
    v_and_b32 v15, 7, v4
    v_lshrrev_b32 v16, 4, v4
    v_lshlrev_b32 v16, 4, v16
    v_mul_u32_u24 v28, 1168, v15
    v_add_u32 v28, v28, v16
    v_add_u32 v28, {L_H2}, v28
    v_mul_u32_u24 v29, 144, v15
    v_add_u32 v29, v29, v16
    v_add_u32 v29, {L_H1}, v29
    v_bfe_u32 v30, v4, 4, 1
    v_mul_u32_u24 v30, 576, v30
    v_and_b32 v17, 15, v4
    v_lshlrev_b32 v17, 1, v17
    s_lshl_b32 s8, s{sWAVE}, 5
    s_add_u32 s8, s8, {L_H1}
    v_add3_u32 v30, v30, v17, s8
    v_and_b32 v15, 8, v4
    v_cmp_eq_u32 vcc, 0, v15
    v_mov_b32 v16, {L_ZERO}
    v_mov_b32 v17, {L_ZERO - 64}
    v_cndmask_b32 v31, v16, v29, vcc
    v_cndmask_b32 v32, v29, v16, vcc
    v_cndmask_b32 v33, v17, v29, vcc
    v_cndmask_b32 v34, v29, v17, vcc
    v_lshlrev_b32 v35, 4, v4
    s_mul_i32 s{sZPA}, s{sMI}, {ZP_S}
    s_mul_i32 s9, s{sWAVE}, 4608
    s_add_u32 s{sZPA}, s{sZPA}, s9
    s_add_u32 s{sZPA}, s{sZPA}, {WS_ZP}
    v_mov_b32 v36, v{vT}
    v_lshrrev_b32 v37, 8, v{vT}
    v_lshrrev_b32 v38, 16, v{vT}
    v_lshrrev_b32 v39, 24, v{vT}""")
    gather([(f"buffer_load_dwordx2 v[{76+2*i}:{77+2*i}], v14, {WS}, s13 offen offset:{256*i} sc1", [77+2*i]) for i in range(9)], vT, sleep=4)
    for i in range(9): unpack(40 + 2 * i, 76 + 2 * i)
    gather([(f"buffer_load_dwordx2 v[{76+2*i}:{77+2*i}], v14, {WS}, s14 offen offset:{256*i} sc1", [77+2*i]) for i in range(9)], vT, sleep=4)
    for i in range(9):
        unpack(18, 76 + 2 * i)
        a(f"v_add_f32 v18, 1.0, v18\n v_add_f32 v19, 1.0, v19\n v_cvt_pk_bf16_f32 v20, v18, v19")
        unpack(58 + 2 * i, 20)
    a.label("L_noMb")
    a("s_waitcnt vmcnt(0)")
    a(f"s_cmp_eq_u32 s{sWOT}, -1\n s_cbranch_scc1 L_noWOb")
    a(f"s_lshl_b32 s8, s{sWAVE}, 13\n s_add_u32 s8, s8, {L_WO}\n v_add_u32 v14, s8, v10")
    for s_ in range(2):
        for jn in range(4): tr_pair(64 + 16 * s_ + 4 * jn, 14, s_ * 4096 + jn * 32)
    a(f"""s_mul_i32 s12, s{sWOT}, 57
    s_lshr_b32 s12, s12, 9
    s_lshl_b32 s8, s12, 12
    s_lshl_b32 s9, s{sWAVE}, 9
    s_add_u32 s8, s8, s9
    s_add_u32 s8, s8, {WS_OP}
    v_lshlrev_b32 v14, 11, v24
    v_lshlrev_b32 v15, 4, v25
    v_add3_u32 v14, v14, v15, s8""")
    for b in range(8): a(f"v_add_u32 v{96+b}, {b*65536}, v14")
    a(f"""s_mul_i32 s8, s{sWAVE}, 1152
    s_add_u32 s8, s8, {L_AB}
    v_mul_u32_u24 v32, 144, v24
    v_lshlrev_b32 v15, 2, v25
    v_add3_u32 v32, v32, v15, s8
    v_and_b32 v33, 7, v4
    v_mul_u32_u24 v33, 144, v33
    v_lshrrev_b32 v15, 4, v4
    v_lshlrev_b32 v15, 4, v15
    v_add3_u32 v33, v33, v15, s8
    v_bfe_u32 v34, v4, 4, 1
    v_lshlrev_b32 v34, 10, v34
    v_and_b32 v15, 15, v4
    v_lshlrev_b32 v15, 2, v15
    s_lshl_b32 s8, s{sWAVE}, 11
    s_add_u32 s8, s8, {L_RB2}
    v_add3_u32 v34, v34, v15, s8
    s_lshl_b32 s8, s{sWAVE}, 9
    s_add_u32 s8, s8, {L_RB2}
    v_lshlrev_b32 v35, 8, v24
    v_lshlrev_b32 v15, 3, v25
    v_add3_u32 v35, v35, v15, s8
    s_lshl_b32 s{sYPA}, s{sWOT}, 12
    s_lshl_b32 s9, s{sWAVE}, 10
    s_add_u32 s{sYPA}, s{sYPA}, s9
    s_add_u32 s{sYPA}, s{sYPA}, {WS_YP}
    v_lshlrev_b32 v36, 4, v4
    v_mov_b32 v137, v{vT}
    v_mov_b32 v139, v{vT}
    s_waitcnt lgkmcnt(0)""")
    a.label("L_noWOb")
    stamp(6)
    if dry:
        a(f"s_mov_b64 {FULL}, 0\n s_mov_b64 exec, 0\n s_branch L_tail")
    a.label("L_be")
    a("s_barrier")
    a.label("L_tail")
    stamp(7)
    a(f"""ds_read_b32 v16, v2
    ds_read_b32 v17, v2 offset:{PT_W}
    ds_read_b32 v18, v2 offset:{2*PT_W}
    ds_read_b32 v19, v2 offset:{3*PT_W}
    s_waitcnt lgkmcnt(0)
    v_add_f32 v16, v16, v17
    v_add_f32 v18, v18, v19
    v_add_f32 v20, v16, v18""")
    guarded(f"buffer_store_dwordx2 v[20:21], v13, {WS}, s{sOPA} offen sc1")

    a(f"s_cmp_eq_u32 s{sWOT}, -1\n s_cbranch_scc1 L_noWOc")
    gather([(f"buffer_load_dwordx4 v[{104+4*b}:{107+4*b}], v{96+b}, {WS}, 0 offen sc1", [105+4*b, 107+4*b]) for b in range(8)], vT, fast=16)
    stamp(8)
    for bp in range(4):
        r0 = 104 + 8 * bp; r1 = r0 + 4
        a(f"v_permlane32_swap_b32 v{r0}, v{r1}\n v_permlane32_swap_b32 v{r0+2}, v{r1+2}")
    for bp in range(4):
        r0 = 104 + 8 * bp; r1 = r0 + 4
        a(f"v_add_f32 v{r0}, v{r0}, v{r1}\n v_add_f32 v{r0+2}, v{r0+2}, v{r1+2}\n v_cvt_pk_bf16_f32 v{r0}, v{r0}, v{r0+2}")
        a(f"ds_write_b32 v32, v{r0} offset:{288*bp}")
    a(f"""s_waitcnt lgkmcnt(0)
    ds_read_b128 v[104:107], v33
    ds_read_b128 v[108:111], v33 offset:64""")
    for s_ in range(2):
        a(f"s_waitcnt lgkmcnt({1-s_})")
        for jn in range(4):
            r = 64 + 16 * s_ + 4 * jn; ac = 112 + 4 * jn
            c = "0" if s_ == 0 else f"v[{ac}:{ac+3}]"
            a(f"{MF} v[{ac}:{ac+3}], v[{104+4*s_}:{107+4*s_}], v[{r}:{r+3}], {c}")
    a("s_mov_b32 exec_hi, 0")
    for jn in range(4):
        for rp in range(2):
            a(f"ds_write2_b32 v34, v{112+4*jn+2*rp}, v{113+4*jn+2*rp} offset0:{128*rp + 16*jn} offset1:{128*rp + 64 + 16*jn}")
    a(f"s_mov_b64 exec, {FULL}\n s_waitcnt lgkmcnt(0)")
    barrier_tail()
    a(f"""ds_read_b64 v[104:105], v35
    ds_read_b64 v[106:107], v35 offset:2048
    ds_read_b64 v[108:109], v35 offset:4096
    ds_read_b64 v[110:111], v35 offset:6144
    s_waitcnt lgkmcnt(0)
    v_pk_add_f32 v[104:105], v[104:105], v[106:107]
    v_pk_add_f32 v[108:109], v[108:109], v[110:111]
    v_add_f32 v136, v104, v108
    v_add_f32 v138, v105, v109""")
    guarded(f"buffer_store_dwordx4 v[136:139], v36, {WS}, s{sYPA} offen sc1")
    stamp(9)
    a.label("L_noWOc")

    a(f"s_cmp_eq_u32 s{sB1}, -1\n s_cbranch_scc1 L_noB1b")
    gather([(f"buffer_load_dwordx4 v[{104+4*i}:{107+4*i}], v{144+i}, {WS}, 0 offen sc1", [105+4*i, 107+4*i]) for i in range(8)], vT, fast=16)
    stamp(10)
    for st in (4, 2, 1):
        for i in range(st):
            a(f"v_add_f32 v{104+4*i}, v{104+4*i}, v{104+4*(i+st)}\n v_add_f32 v{106+4*i}, v{106+4*i}, v{106+4*(i+st)}")
    a(f"""v_mov_b32 v105, v104
    v_mov_b32 v107, v106
    v_permlane32_swap_b32 v104, v105
    v_permlane32_swap_b32 v106, v107
    v_add_f32 v104, v104, v105
    v_add_f32 v106, v106, v107
    v_cvt_pk_bf16_f32 v104, v104, v106""")
    unpack(18, 104)
    a("v_pk_mul_f32 v[18:19], v[18:19], v[26:27]\n v_cvt_pk_bf16_f32 v104, v18, v19")
    unpack(18, 104)
    a(f"v_pk_add_f32 v[18:19], v[18:19], v[28:29]\n v_cvt_pk_bf16_f32 v20, v18, v19\n s_mov_b32 exec_hi, 0")
    guarded(f"buffer_store_dwordx2 v[20:21], v31, {WS}, s{sX1A} offen sc1")
    a(f"s_mov_b64 exec, {FULL}")
    stamp(11)
    a.label("L_noB1b")

    a(f"s_cmp_eq_u32 s{sMI}, -1\n s_cbranch_scc1 L_noMc")
    a("s_cbranch_execz L_m_notr")
    a(f"s_lshl_b32 s8, s{sWAVE}, 5\n v_add_u32 v14, s8, v10\n v_add_u32 v15, 0x9000, v14")
    for s_ in range(18):
        tr_pair(112 + 4 * s_, 14 if s_ < 9 else 15, (s_ % 9) * 4096)
    a(f"""v_mul_u32_u24 v14, 1152, v11
    v_add_u32 v14, v14, v12
    s_mul_i32 s8, s{sWAVE}, 288
    s_add_u32 s8, s8, 73728
    v_add_u32 v14, s8, v14""")
    for t in range(9):
        for s_ in range(2): tr_pair(184 + 8 * t + 4 * s_, 14, s_ * 32 * 1152 + t * 32, 4 * 1152)
    a("s_waitcnt lgkmcnt(0)\n s_barrier")
    a.label("L_m_notr")
    stamp(8)
    gather([(f"buffer_load_dwordx2 v[{76+2*i}:{77+2*i}], v26, {WS}, 0 offen offset:{256*i} sc1", [77+2*i]) for i in range(9)], vT, fast=16)
    stamp(9)
    for i in range(9): unpack(94 + 2 * i, 76 + 2 * i)
    a("v_pk_add_f32 v[16:17], v[94:95], v[96:97]\n v_pk_add_f32 v[18:19], v[98:99], v[100:101]")
    a("v_pk_add_f32 v[16:17], v[16:17], v[102:103]\n v_pk_add_f32 v[18:19], v[18:19], v[104:105]")
    a("v_pk_add_f32 v[16:17], v[16:17], v[106:107]\n v_pk_add_f32 v[18:19], v[18:19], v[108:109]")
    a("v_pk_add_f32 v[16:17], v[16:17], v[110:111]\n v_pk_add_f32 v[16:17], v[16:17], v[18:19]\n v_add_f32 v16, v16, v17")
    red32("v_add_f32", 16, 17)
    a(f"v_mul_f32 v16, {f2u(1.0/576)}, v16\n v_mov_b32 v17, v16")
    for i in range(9): a(f"v_pk_add_f32 v[{76+2*i}:{77+2*i}], v[{94+2*i}:{95+2*i}], v[16:17] neg_lo:[0,1] neg_hi:[0,1]")
    a("v_pk_mul_f32 v[18:19], v[76:77], v[76:77]\n v_pk_mul_f32 v[22:23], v[78:79], v[78:79]")
    for i in range(2, 9):
        ac = 18 if i % 2 == 0 else 22
        a(f"v_pk_fma_f32 v[{ac}:{ac+1}], v[{76+2*i}:{77+2*i}], v[{76+2*i}:{77+2*i}], v[{ac}:{ac+1}]")
    a("v_pk_add_f32 v[18:19], v[18:19], v[22:23]\n v_add_f32 v18, v18, v19")
    red32("v_add_f32", 18, 19)
    ln_finish(16, 18)
    a("v_mov_b32 v17, v16\n v_mov_b32 v19, v18")
    X = lambda i: f"v[{94+2*i}:{95+2*i}]"
    for i in range(9): a(f"v_pk_add_f32 {X(i)}, {X(i)}, v[16:17] neg_lo:[0,1] neg_hi:[0,1]")
    for (op, other) in (("v_pk_mul_f32", lambda i: "v[18:19]"), ("v_pk_mul_f32", lambda i: f"v[{58+2*i}:{59+2*i}]"), ("v_pk_add_f32", lambda i: f"v[{40+2*i}:{41+2*i}]")):
        for i in range(9): a(f"v_cvt_pk_bf16_f32 v{76+i}, v{94+2*i}, v{95+2*i}")
        for i in range(9): unpack(94 + 2 * i, 76 + i)
        for i in range(9): a(f"{op} {X(i)}, {X(i)}, {other(i)}")
    for i in range(9):
        a(f"v_cvt_pk_bf16_f32 v{76+i}, v{94+2*i}, v{95+2*i}\n ds_write_b32 v27, v{76+i} offset:{128*i}")
    a("s_waitcnt lgkmcnt(0)")
    barrier_tail()
    for s_ in range(18): a(f"ds_read_b128 v[{40+4*s_}:{43+4*s_}], v28 offset:{64*s_}")
    for s_ in range(18):
        a(f"s_waitcnt lgkmcnt({min(15, 17 - s_)})")
        ac = 16 + 4 * (s_ % 2)
        c = "0" if s_ < 2 else f"v[{ac}:{ac+3}]"
        a(f"{MF} v[{ac}:{ac+3}], v[{40+4*s_}:{43+4*s_}], v[{112+4*s_}:{115+4*s_}], {c}")
    a("v_pk_add_f32 v[16:17], v[16:17], v[20:21]\n v_pk_add_f32 v[18:19], v[18:19], v[22:23]")
    for r in range(4): a(f"v_max_f32 v{16+r}, 0, v{16+r}")
    for r in range(4): a(f"v_cvt_pk_bf16_f32 v{16+r}, v{16+r}, v{16+r}")
    a("s_mov_b32 exec_hi, 0")
    for r in range(4): a(f"ds_write_b16 v30, v{16+r} offset:{144*r}")
    a(f"s_mov_b64 exec, {FULL}\n s_mov_b32 s9, 0xff\n s_add_u32 s8, s{sZPA}, 4096\n s_waitcnt lgkmcnt(0)")
    barrier_tail()
    a(f"""ds_read_b128 v[76:79], v31
    ds_read_b128 v[80:83], v32
    ds_read_b128 v[84:87], v33 offset:64
    ds_read_b128 v[88:91], v34 offset:64""")
    for step in range(4):
        s_, par = step // 2, step % 2
        a(f"s_waitcnt lgkmcnt({3-step})")
        for tp in range(5):
            t = 2 * tp + par
            if t > 8: continue
            ac = 92 + 4 * tp; r = 184 + 8 * t + 4 * s_; A = 76 + 8 * s_ + 4 * par
            c = "0" if step == 0 else f"v[{ac}:{ac+3}]"
            a(f"{MF} v[{ac}:{ac+3}], v[{A}:{A+3}], v[{r}:{r+3}], {c}")
    order = [4, 0, 1, 2, 3]
    for tp in order:
        ac = 92 + 4 * tp
        for k in range(4): a(f"v_bfi_b32 v{ac+k}, s9, v{36+k}, v{ac+k}")
        if tp == 4: a("s_mov_b32 exec_hi, 0")
        guarded(f"buffer_store_dwordx4 v[{ac}:{ac+3}], v35, {WS}, s{8 if tp == 4 else sZPA} offen offset:{(tp%4)*1024} sc1")
        if tp == 4: a(f"s_mov_b64 exec, {FULL}")
    stamp(10)
    a.label("L_noMc")

    a(f"s_cmp_eq_u32 s{sD}, -1\n s_cbranch_scc1 L_noDb")
    gather([(f"buffer_load_dwordx2 v[30:31], v27, {WS}, 0 offen sc1", [31])], vT, mask=0xffff, sleep=2)
    stamp(12)
    a("v_cmp_eq_u32 vcc, 0, v29")
    unpack(16, 30)
    a("v_cndmask_b32 v30, v17, v16, vcc\n s_mov_b32 s8, 0x0c0c0400\n s_mov_b32 s9, 0x04000c0c")
    if dsleep: guarded(f"s_sleep {dsleep}")
    def zcheck(j):
        r = 108 + 4 * j
        a(f"v_perm_b32 v16, v{r+1}, v{r}, s8\n v_perm_b32 v17, v{r+3}, v{r+2}, s9\n v_or_b32 v16, v16, v17\n v_cmp_ne_u32 vcc, v{vT}, v16")
    for k in range(4): a(f"v_mov_b32 v{124+k}, 0")
    gather([(f"buffer_load_dwordx4 v[{108+4*i}:{111+4*i}], v{144+i}, {WS}, 0 offen sc1", None, 'lo' if i == 4 else None) for i in range(5)], vT, sleep=1, check=zcheck)
    stamp(13)
    for h in range(2):
        o = 2 * h
        a(f"""v_pk_add_f32 v[{108+o}:{109+o}], v[{108+o}:{109+o}], v[{112+o}:{113+o}]
        v_pk_add_f32 v[{116+o}:{117+o}], v[{116+o}:{117+o}], v[{120+o}:{121+o}]""")
    for h in range(2):
        o = 2 * h
        a(f"v_pk_add_f32 v[{108+o}:{109+o}], v[{108+o}:{109+o}], v[{124+o}:{125+o}]")
    for h in range(2):
        o = 2 * h
        a(f"v_pk_add_f32 v[{108+o}:{109+o}], v[{108+o}:{109+o}], v[{116+o}:{117+o}]")
    for pat in ("row_ror:8", "row_ror:4"):
        for r in range(108, 112): a(f"v_add_f32_dpp v{r}, v{r}, v{r} {pat} {DPPQ}")
    a(f"""s_mov_b32 s10, 0x00f000f0
    s_mov_b32 s11, 0x00f000f0
    s_mov_b32 s12, 0xf000f000
    s_mov_b32 s13, 0xf000f000
    s_mov_b32 s14, 0xff00ff00
    s_mov_b32 s15, 0xff00ff00
    v_cndmask_b32 v108, v108, v109, s[10:11]
    v_cndmask_b32 v110, v110, v111, s[12:13]
    v_cndmask_b32 v108, v108, v110, s[14:15]""")
    for sw in ("v_permlane16_swap_b32", "v_permlane32_swap_b32"):
        a(f"v_mov_b32 v109, v108\n {sw} v108, v109\n v_add_f32 v108, v108, v109")
    rnd(108, 108)
    a("v_mul_f32 v108, v108, v26")
    rnd(108, 108)
    a(f"v_add_f32 v108, v108, v30\n v_cvt_pk_bf16_f32 v108, v108, v108\n s_and_b32 exec_lo, exec_lo, 0xffff\n s_mov_b32 exec_hi, 0")
    guarded(f"buffer_store_short v108, v28, s[{SRD_A}:{SRD_A+3}], 0 offen")
    a(f"""s_cmp_eq_u32 s{sD}, 0
    s_cbranch_scc0 L_noEp
    s_and_b32 exec_lo, exec_lo, 1""")
    guarded(f"buffer_store_dword v{vT}, v5, {WS}, 0 offen sc1")
    a.label("L_noEp")
    a(f"s_mov_b64 exec, {FULL}")
    a.label("L_noDb")
    if dry:
        a(f"""s_cmp_eq_u32 s{sFULL}, 0
        s_cbranch_scc0 L_fin
        s_mov_b64 {FULL}, -1
        s_mov_b64 exec, -1
        v_mov_b32 v21, v{vT}
        s_branch L_be
        L_fin:""")
    stamp(14)
    if debug: a(f"s_add_u32 s{sWAVE}, s{sWAVE}, 4")
    dump_stamps()
    a.label("L_end")
    a("s_endpgm")
    a.raw('.section .rodata,"a"'); a.raw(".p2align 6"); a.raw(f".amdhsa_kernel {NAME}_kernel")
    for l in (".amdhsa_next_free_vgpr 256", ".amdhsa_next_free_sgpr 102", ".amdhsa_accum_offset 256",
              ".amdhsa_group_segment_fixed_size 0", ".amdhsa_kernarg_size 104", ".amdhsa_user_sgpr_count 2",
              ".amdhsa_user_sgpr_kernarg_segment_ptr 1", ".amdhsa_system_sgpr_workgroup_id_x 1"):
        a.raw("  " + l)
    a.raw(".end_amdhsa_kernel")
    return a.text()

if __name__ == "__main__":
    out = sys.argv[1] if len(sys.argv) > 1 else f"cdna_kernels/{NAME}.s"
    dbg = len(sys.argv) > 2 and sys.argv[2] == "debug"
    kw = dict(x.split('=') for x in sys.argv[3:])
    kw = {k: (' ' + v.replace('+', ' ') if v else '') if k in ('kf', 'vf', 'wf') else int(v) for k, v in kw.items()}
    open(out, "w").write(build(dbg, **kw))
    for u in range(144): assert (u * 57) >> 9 == u // 9
```
